```python
import torch

def _softmax(x, axis=-1):
    return torch.softmax(x, dim=axis)
def _gelu(x):
    return torch.nn.functional.gelu(x, approximate="tanh")
def _silu(x):
    return torch.nn.functional.silu(x)
def _sigmoid(x):
    return torch.sigmoid(x)
def _layernorm(x, axis=-1, eps=1e-5):
    m = x.mean(dim=axis, keepdim=True)
    v = x.var(dim=axis, keepdim=True, unbiased=False)
    return (x - m) / torch.sqrt(v + eps)
def _scatter_add(tgt, idx, src, axis=0):
    return tgt.clone().index_add_(axis, idx, src)
def _segment_sum(src, seg, n):
    out = torch.zeros((n,) + src.shape[1:], dtype=src.dtype)
    return out.index_add_(0, seg, src)
def _pad(x, pw):
    flat = tuple(v for pair in reversed(pw) for v in pair)
    return torch.nn.functional.pad(x, flat)

kernel_name = 'concat_heads__sliding_block__spectral_fnet__prompt'

def setup_inputs():

    _w = (lambda a: (lambda t: t.to(torch.bfloat16) if t.is_floating_point() else t)(torch.as_tensor(a)))
    def _A_setup():
        B, S, D = 1, 2048, 1024
        return {
            "x": _w((lambda *s: torch.randn(*s, dtype=torch.bfloat16) * 0.2)(B, S, D)),
            "wqkv": _w((lambda *s: torch.randn(*s, dtype=torch.bfloat16) * 0.8)(D, 3 * D)),
            "wo": _w((lambda *s: torch.randn(*s, dtype=torch.bfloat16) * 0.2)(D, D)),
        }
    _A_in = _A_setup()

    def _B_setup():
        B, S, D = 1, 2048, 1024
        ns = torch.arange(S)[:, None] * torch.arange(S)[None, :]
        nd = torch.arange(D)[:, None] * torch.arange(D)[None, :]
        Ws_re = torch.cos(-2.0 * torch.pi * ns / S).to(float)
        Ws_im = torch.sin(-2.0 * torch.pi * ns / S).to(float)
        Wd_re = torch.cos(-2.0 * torch.pi * nd / D).to(float)
        Wd_im = torch.sin(-2.0 * torch.pi * nd / D).to(float)
        return {
            "x": _w((lambda *s: torch.randn(*s, dtype=torch.bfloat16) * 0.05)(B, S, D)),
            "dft_seq_re": _w(Ws_re),
            "dft_seq_im": _w(Ws_im),
            "dft_hid_re": _w(Wd_re),
            "dft_hid_im": _w(Wd_im),
        }
    _B_in = _B_setup()

    return {
        "A_x": _A_in["x"],
        "A_wqkv": _A_in["wqkv"],
        "A_wo": _A_in["wo"],
        "B_x": _B_in["x"],
        "B_dft_seq_re": _B_in["dft_seq_re"],
        "B_dft_seq_im": _B_in["dft_seq_im"],
        "B_dft_hid_re": _B_in["dft_hid_re"],
        "B_dft_hid_im": _B_in["dft_hid_im"],
    }

def reference(A_x, A_wqkv, A_wo, B_x, B_dft_seq_re, B_dft_seq_im, B_dft_hid_re, B_dft_hid_im):
    def _A_ref(x, wqkv, wo):
        B, S, D = x.shape
        H = 32; Dh = D // H; W = 256
        qkv = (lambda x, *d: x.permute(*d))((x @ wqkv).reshape(B, S, 3, H, Dh), 2, 0, 3, 1, 4)
        q, k, v = qkv[0], qkv[1], qkv[2]
        scores = torch.einsum("bhqd,bhkd->bhqk", q, k) * (Dh ** -0.5)
        idx = torch.arange(S)
        mask = (idx[:, None] - idx[None, :] >= 0) & (idx[:, None] - idx[None, :] < W)
        scores = torch.where(mask[None, None], scores, -1e9)
        p = _softmax(scores, axis=-1)
        o = torch.einsum("bhqk,bhkd->bhqd", p, v)
        return (lambda x, *d: x.permute(*d))(o, 0, 2, 1, 3).reshape(B, S, D) @ wo

    def _B_ref(x, dft_seq_re, dft_seq_im, dft_hid_re, dft_hid_im):
        a = torch.einsum("bsd,ed->bse", x, dft_hid_re)
        b = torch.einsum("bsd,ed->bse", x, dft_hid_im)
        y = torch.einsum("ts,bse->bte", dft_seq_re, a) - torch.einsum("ts,bse->bte", dft_seq_im, b)
        return y

    a = _A_ref(A_x, A_wqkv, A_wo)
    b = _B_ref(B_x, B_dft_seq_re, B_dft_seq_im, B_dft_hid_re, B_dft_hid_im)
    return torch.concatenate([a, b], axis=-1)
```

```python
NAME = "concat_heads__sliding_block__spectral_fnet__prompt"

class Asm:
    def __init__(self):
        self.lines = []
        self.uid = 0
    def __call__(self, s, *a):
        if a: s = s % a
        for l in s.split("\n"):
            l = l.strip()
            if l: self.lines.append("    " + l)
    def label(self, name):
        self.lines.append(name + ":")
    def newlabel(self, p="L"):
        self.uid += 1
        return "%s_%d" % (p, self.uid)
    def c(self, s):
        self.lines.append("    ; " + s)
    def text(self):
        return "\n".join(self.lines) + "\n"

def v(i, n=1):
    return "v%d" % i if n == 1 else "v[%d:%d]" % (i, i + n - 1)
def a(i, n=1):
    return "a%d" % i if n == 1 else "a[%d:%d]" % (i, i + n - 1)
def s(i, n=1):
    return "s%d" % i if n == 1 else "s[%d:%d]" % (i, i + n - 1)

HEADER_COMMENT = """; Kernarg layout for this problem (88 bytes, ptrs only, base s[0:1]):
"""

def module(kernels, single=False):
    out = HEADER_COMMENT
    for k in kernels:
        if single:
            out += "; @launch grid=(%d,1,1) block=(%d,1,1) lds=%d\n" % (k["grid"], k["block"], k["lds"])
        else:
            out += "; @launch kernel=%s grid=(%d,1,1) block=(%d,1,1) lds=%d\n" % (k["name"], k["grid"], k["block"], k["lds"])
    out += '.amdgcn_target "amdgcn-amd-amdhsa--gfx950"\n.text\n'
    seen = []
    for k in kernels:
        if k["name"] in seen: continue
        seen.append(k["name"])
        out += ".globl %s\n.p2align 8\n.type %s,@function\n%s:\n" % (k["name"], k["name"], k["name"])
        out += k["body"]
    out += '.section .rodata,"a"\n'
    seen = []
    for k in kernels:
        if k["name"] in seen: continue
        seen.append(k["name"])
        out += ".p2align 6\n.amdhsa_kernel %s\n" % k["name"]
        out += "  .amdhsa_next_free_vgpr %d\n  .amdhsa_next_free_sgpr %d\n  .amdhsa_accum_offset %d\n" % (k["vgpr"], k.get("sgpr", 102), k["accum"])
        out += "  .amdhsa_group_segment_fixed_size 0\n  .amdhsa_kernarg_size 88\n  .amdhsa_user_sgpr_count 2\n"
        out += "  .amdhsa_user_sgpr_kernarg_segment_ptr 1\n  .amdhsa_system_sgpr_workgroup_id_x 1\n"
        out += "  .amdhsa_float_denorm_mode_32 3\n  .amdhsa_float_denorm_mode_16_64 3\n"
        out += ".end_amdhsa_kernel\n"
    return out

def srd(A, d, base, nbytes):
    A("s_mov_b32 s%d, s%d", d, base)
    A("s_and_b32 s%d, s%d, 0xffff", d + 1, base + 1)
    A("s_mov_b32 s%d, 0x%x", d + 2, nbytes)
    A("s_mov_b32 s%d, 0x20000", d + 3)
```

```python
from asmlib import *
import sys

CYC=False
def stamp(A, idx, nst, tmp=4):
    A("s_memtime s[60:61]" if CYC else "s_memrealtime s[60:61]")
    A("s_waitcnt lgkmcnt(0)")
    A("v_mov_b32 v%d, s60\nv_mov_b32 v%d, s61" % (tmp, tmp + 1))
    A("s_mul_i32 s62, s2, %d" % (nst * 8))
    A("v_mov_b32 v%d, s62" % (tmp + 2))
    A("s_mov_b64 s[62:63], exec")
    A("s_mov_b64 exec, 1")
    A("buffer_store_dwordx2 v[%d:%d], v%d, s[64:67], 0 offen offset:%d" % (tmp, tmp + 1, tmp + 2, idx * 8))
    A("s_mov_b64 exec, s[62:63]")

def gen(NS=3, compute=True, load=True, stamps=True, path="g1.s", xmap=0, nt=False, per=(2,2,1,1,1,1), cyc=False):
    global CYC
    CYC = cyc
    A = Asm()
    STAGE = 40960
    NST = 4
    A("s_cmp_ge_u32 s2, 256")
    A("s_cbranch_scc1 L_end")
    A("s_load_dwordx4 s[4:7], s[0:1], 0")
    A("s_load_dwordx2 s[8:9], s[0:1], 80")
    A("v_lshrrev_b32 v1, 6, v0")
    A("v_and_b32 v0, 63, v0")
    A("v_readfirstlane_b32 s3, v1")
    A("s_and_b32 s10, s2, 7")
    A("s_lshr_b32 s11, s2, 3")
    if xmap == 0:
        A("s_and_b32 s12, s10, 1\ns_lshl_b32 s12, s12, 3\ns_and_b32 s13, s11, 7\ns_add_u32 s12, s12, s13")
        A("s_lshr_b32 s13, s10, 1\ns_lshl_b32 s13, s13, 2\ns_lshr_b32 s14, s11, 3\ns_add_u32 s13, s13, s14")
    elif xmap == 1:
        A("s_and_b32 s12, s10, 3\ns_lshl_b32 s12, s12, 2\ns_and_b32 s13, s11, 3\ns_add_u32 s12, s12, s13")
        A("s_lshr_b32 s13, s10, 2\ns_lshl_b32 s13, s13, 3\ns_lshr_b32 s14, s11, 2\ns_add_u32 s13, s13, s14")
    else:
        A("s_and_b32 s12, s2, 15\ns_lshr_b32 s13, s2, 4")
    A("s_waitcnt lgkmcnt(0)")
    srd(A, 16, 4, 2048 * 1024 * 2)
    srd(A, 20, 6, 1024 * 3072 * 2)
    srd(A, 24, 8, 64 << 20)
    if stamps:
        A("s_add_u32 s64, s8, 0x8000000\ns_addc_u32 s65, s9, 0\ns_and_b32 s65, s65, 0xffff\ns_mov_b32 s66, 0x100000\ns_mov_b32 s67, 0x20000")
    A("s_cmp_ge_u32 s3, 4")
    A("s_cbranch_scc1 L_loader")
    if stamps:
        A("s_cmp_eq_u32 s3, 0\ns_cbranch_scc0 L_ns0")
        stamp(A, 0, NST)
        A.label("L_ns0")
    A("s_and_b32 s14, s3, 1")
    A("s_lshr_b32 s15, s3, 1")
    A("v_and_b32 v6, 31, v0")
    A("v_lshrrev_b32 v7, 5, v0")
    A("v_lshrrev_b32 v8, 1, v6\nv_and_b32 v8, 7, v8")
    A("v_xor_b32 v8, v8, v7")
    A("v_lshlrev_b32 v8, 4, v8")
    A("v_lshlrev_b32 v9, 7, v6")
    A("v_add_u32 v2, v8, v9")
    A("s_lshl_b32 s28, s14, 13")
    A("v_add_u32 v2, s28, v2")
    A("v_xor_b32 v3, 32, v2\nv_xor_b32 v4, 64, v2\nv_xor_b32 v5, 0x60, v2")
    A("v_lshrrev_b32 v8, 2, v0\nv_and_b32 v8, 3, v8")
    A("v_lshrrev_b32 v9, 1, v8")
    A("v_xor_b32 v9, s15, v9")
    A("v_lshlrev_b32 v9, 6, v9")
    A("v_lshlrev_b32 v8, 7, v8")
    A("v_add_u32 v10, v8, v9")
    A("v_lshlrev_b32 v8, 10, v7")
    A("v_add_u32 v10, v10, v8")
    A("v_and_b32 v8, 16, v0\nv_lshlrev_b32 v8, 1, v8")
    A("v_add_u32 v10, v10, v8")
    A("v_and_b32 v8, 3, v0\nv_lshlrev_b32 v8, 3, v8")
    A("v_add_u32 v10, v10, v8")
    A("v_add_u32 v10, 16384, v10")
    for i in range(96): A("v_accvgpr_write_b32 a%d, 0" % i)
    def XF(p, mt): return 16 + 20 * p + 4 * mt
    def WF(p, seg): return 24 + 20 * p + 4 * seg
    def reads(p, j, slot_imm=0):
        r = []
        for mt in range(2):
            r.append("ds_read_b128 %s, v%d offset:%d" % (v(XF(p, mt), 4), 2 + j, mt * 4096 + slot_imm))
        for seg in range(3):
            for half in range(2):
                r.append("ds_read_b64_tr_b16 %s, v10 offset:%d" % (v(WF(p, seg) + 2 * half, 2), (j * 6 + seg * 2) * 1024 + half * 512 + slot_imm))
        return r
    def mfmas(p):
        r = []
        for seg in range(3):
            for mt in range(2):
                acc = a((mt * 3 + seg) * 16, 16)
                if seg < 2:
                    r.append("v_mfma_f32_32x32x16_bf16 %s, %s, %s, %s" % (acc, v(WF(p, seg), 4), v(XF(p, mt), 4), acc))
                else:
                    r.append("v_mfma_f32_32x32x16_bf16 %s, %s, %s, %s" % (acc, v(XF(p, mt), 4), v(WF(p, seg), 4), acc))
        return r
    def interleave(ms, rs):
        out = []
        k = 0
        for i, m in enumerate(ms):
            out.append(m)
            for _ in range(per[i]):
                if k < len(rs): out.append(rs[k]); k += 1
        return out
    A("s_mov_b32 s30, 0")
    A("s_mov_b32 s31, 0")
    A("s_barrier")
    if stamps:
        A("s_cmp_eq_u32 s3, 0\ns_cbranch_scc0 L_ns1")
        stamp(A, 1, NST, tmp=60)
        A.label("L_ns1")
    if compute:
        for r in reads(0, 0): A(r)
    A.label("L_cloop")
    if compute:
        for j in range(3):
            A("s_waitcnt lgkmcnt(0)")
            for l in interleave(mfmas(j & 1), reads((j + 1) & 1, j + 1)): A(l)
        A("s_waitcnt lgkmcnt(0)")
    A("s_add_u32 s30, s30, 1")
    A("s_add_u32 s32, s31, %d" % STAGE)
    A("s_cmp_eq_u32 s32, %d" % (STAGE * NS))
    A("s_cselect_b32 s32, 0, s32")
    A("s_sub_u32 s33, s32, s31")
    A("s_mov_b32 s31, s32")
    for r in (2, 3, 4, 5, 10): A("v_add_u32 v%d, s33, v%d" % (r, r))
    A("s_cmp_eq_u32 s30, 16")
    A("s_cbranch_scc1 L_cdone")
    A("s_barrier")
    if compute:
        for l in interleave(mfmas(1), reads(0, 0)): A(l)
    A("s_branch L_cloop")
    A.label("L_cdone")
    if compute:
        for l in mfmas(1): A(l)
    if stamps:
        A("s_cmp_eq_u32 s3, 0\ns_cbranch_scc0 L_ns2")
        stamp(A, 2, NST, tmp=60)
        A.label("L_ns2")
    A("s_nop 7\ns_nop 7")
    A("s_lshl_b32 s34, s12, 2\ns_lshl_b32 s35, s14, 1\ns_add_u32 s34, s34, s35")
    A("s_lshl_b32 s35, s13, 1\ns_add_u32 s35, s35, s15")
    A("s_lshl_b32 s34, s34, 16\ns_lshl_b32 s35, s35, 11\ns_add_u32 s34, s34, s35")
    A("v_lshlrev_b32 v11, 4, v0")
    for mt in range(2):
        for seg in range(3):
            base = (mt * 3 + seg) * 16
            for i in range(16): A("v_accvgpr_read_b32 v%d, a%d" % (16 + i, base + i))
            for i in range(8): A("v_cvt_pk_bf16_f32 v%d, v%d, v%d" % (32 + (seg & 1) * 8 + i, 16 + 2 * i, 17 + 2 * i))
            A("s_add_u32 s36, s34, %d" % (seg * (4 << 20) + mt * 65536))
            A("buffer_store_dwordx4 %s, v11, s[24:27], s36 offen" % v(32 + (seg & 1) * 8, 4))
            A("buffer_store_dwordx4 %s, v11, s[24:27], s36 offen offset:1024" % v(36 + (seg & 1) * 8, 4))
    if stamps:
        A("s_waitcnt vmcnt(0)")
        A("s_cmp_eq_u32 s3, 0\ns_cbranch_scc0 L_ns3")
        stamp(A, 3, NST, tmp=60)
        A.label("L_ns3")
    A("s_endpgm")
    A.label("L_loader")
    A("s_sub_u32 s14, s3, 4")
    A("v_lshrrev_b32 v6, 3, v0")
    A("v_lshrrev_b32 v7, 4, v0")
    A("v_and_b32 v8, 7, v0")
    A("v_xor_b32 v9, v8, v7")
    A("v_lshlrev_b32 v9, 4, v9")
    A("v_lshlrev_b32 v2, 11, v6")
    A("v_add_u32 v2, v2, v9")
    A("s_lshl_b32 s28, s12, 18\ns_lshl_b32 s29, s14, 16\ns_add_u32 s28, s28, s29")
    A("v_add_u32 v2, s28, v2")
    A("v_xor_b32 v3, 64, v2")
    A("v_add_u32 v3, %d, v3" % (16384 - 1024))
    A("v_add_u32 v4, %d, v2" % (2 * 16384 - 2048))
    A("v_add_u32 v5, %d, v3" % (2 * 16384 - 2048))
    A("v_and_b32 v9, 1, v7\nv_lshlrev_b32 v9, 2, v9\nv_xor_b32 v9, v9, v8\nv_lshlrev_b32 v9, 4, v9")
    A("v_mul_u32_u24 v10, 6144, v6")
    A("v_add_u32 v10, v10, v9")
    A("s_mul_i32 s28, s14, %d" % (16 * 6144))
    A("s_lshl_b32 s29, s13, 7\ns_add_u32 s28, s28, s29")
    A("v_add_u32 v10, s28, v10")
    for t in range(1, 6):
        A("v_add_u32 v%d, %d, v10" % (10 + t, (t & 1) * 8 * 6144 + (t >> 1) * 2048 - 1024 * (t % 3)))
    A("s_lshl_b32 s40, s14, 12")
    A("s_mul_i32 s41, s14, 6144\ns_add_u32 s41, s41, 16384")
    A("s_mov_b32 s42, 0")
    A("s_mov_b32 s43, 0")
    A("s_mov_b32 s44, 0")
    fl = " nt" if nt else ""
    def issue():
        if load:
            A("s_add_u32 m0, s40, s44")
            A("s_nop 0")
            for i in range(4): A("buffer_load_dwordx4 v%d, s[16:19], s42 offen offset:%d%s lds" % (2 + i, 1024 * i, fl))
            A("s_add_u32 m0, s41, s44")
            A("s_nop 0")
            for t in range(3): A("buffer_load_dwordx4 v%d, s[20:23], s43 offen offset:%d%s lds" % (10 + t, 1024 * t, fl))
            A("s_add_u32 m0, m0, 3072")
            A("s_nop 0")
            for t in range(3, 6): A("buffer_load_dwordx4 v%d, s[20:23], s43 offen offset:%d%s lds" % (10 + t, 1024 * (t - 3), fl))
        A("s_add_u32 s42, s42, 128")
        A("s_add_u32 s43, s43, %d" % (64 * 6144))
        A("s_add_u32 s44, s44, %d" % STAGE)
        A("s_cmp_eq_u32 s44, %d" % (STAGE * NS))
        A("s_cselect_b32 s44, 0, s44")
    for i in range(NS): issue()
    A("s_waitcnt vmcnt(%d)" % (10 * (NS - 1)))
    A("s_barrier")
    A("s_mov_b32 s30, 1")
    A.label("L_lloop")
    A("s_waitcnt vmcnt(%d)" % (10 * (NS - 2)))
    A("s_barrier")
    issue()
    A("s_add_u32 s30, s30, 1")
    A("s_cmp_lt_u32 s30, %d" % (17 - NS))
    A("s_cbranch_scc1 L_lloop")
    for s_ in range(17 - NS, 16):
        A("s_waitcnt vmcnt(%d)" % (10 * (15 - s_)))
        A("s_barrier")
    A.label("L_end")
    A("s_endpgm")
    open(path, "w").write(module([dict(name=NAME + "_kernel", body=A.text(), grid=256, block=512, lds=STAGE * NS, vgpr=64 + 96, accum=64)], single=True))

if __name__ == "__main__":
    gen(3, True, False, path="g1_c0.s", per=(3,3,2,0,0,0))
    gen(3, True, False, path="g1_c1.s", per=(4,4,0,0,0,0))
    gen(3, True, False, path="g1_c2.s", per=(2,2,2,2,0,0))
    gen(3, True, False, path="g1_c3.s", per=(8,0,0,0,0,0))
    gen(3, True, True, path="g1_f0.s", per=(3,3,2,0,0,0))
    gen(3, True, True, path="g1_f2.s", per=(2,2,2,2,0,0))
    gen(3, True, False, path="g1_c0c.s", per=(3,3,2,0,0,0), cyc=True)
    gen(3, True, True, path="g1_f0c.s", per=(3,3,2,0,0,0), cyc=True)
```

```python
from asmlib import *
import gemm1
from gemm1 import stamp
import sys

def gen(NS=3, compute=True, load=True, stamps=True, path="g1.s", xmap=0, cyc=False, order=0, nread=16, acc_v=False, filt=0, noread=False):
    gemm1.CYC = cyc
    A = Asm()
    STAGE = 40960
    NST = 4
    A("s_cmp_ge_u32 s2, 256")
    A("s_cbranch_scc1 L_end")
    if filt:
        A("s_and_b32 s4, s2, %d" % filt)
        A("s_cbranch_scc1 L_end")
    A("s_load_dwordx4 s[4:7], s[0:1], 0")
    A("s_load_dwordx2 s[8:9], s[0:1], 80")
    A("v_lshrrev_b32 v1, 6, v0")
    A("v_and_b32 v0, 63, v0")
    A("v_readfirstlane_b32 s3, v1")
    A("s_and_b32 s10, s2, 7")
    A("s_lshr_b32 s11, s2, 3")
    A("s_and_b32 s12, s10, 1\ns_lshl_b32 s12, s12, 3\ns_and_b32 s13, s11, 7\ns_add_u32 s12, s12, s13")
    A("s_lshr_b32 s13, s10, 1\ns_lshl_b32 s13, s13, 2\ns_lshr_b32 s14, s11, 3\ns_add_u32 s13, s13, s14")
    A("s_waitcnt lgkmcnt(0)")
    srd(A, 16, 4, 2048 * 1024 * 2)
    srd(A, 20, 6, 1024 * 3072 * 2)
    srd(A, 24, 8, 64 << 20)
    if stamps:
        A("s_add_u32 s64, s8, 0x8000000\ns_addc_u32 s65, s9, 0\ns_and_b32 s65, s65, 0xffff\ns_mov_b32 s66, 0x100000\ns_mov_b32 s67, 0x20000")
    A("s_cmp_ge_u32 s3, 4")
    A("s_cbranch_scc1 L_loader")
    if stamps:
        A("s_cmp_eq_u32 s3, 0\ns_cbranch_scc0 L_ns0")
        stamp(A, 0, NST)
        A.label("L_ns0")
    A("s_and_b32 s14, s3, 1")
    A("s_lshr_b32 s15, s3, 1")
    A("v_and_b32 v6, 15, v0")
    A("v_lshrrev_b32 v7, 4, v0")
    A("v_lshrrev_b32 v8, 1, v6")
    A("v_xor_b32 v8, v8, v7")
    A("v_lshlrev_b32 v8, 4, v8")
    A("v_lshlrev_b32 v9, 7, v6")
    A("v_add_u32 v2, v8, v9")
    A("s_lshl_b32 s28, s14, 13")
    A("v_add_u32 v2, s28, v2")
    A("v_xor_b32 v3, 64, v2")
    A("v_lshrrev_b32 v8, 2, v0\nv_and_b32 v8, 3, v8")
    A("v_lshrrev_b32 v9, 1, v8")
    A("v_and_b32 v10, 1, v7")
    A("v_lshl_add_u32 v9, v10, 1, v9")
    A("s_lshl_b32 s28, s15, 1")
    A("v_xor_b32 v9, s28, v9")
    A("v_lshlrev_b32 v9, 5, v9")
    A("v_lshl_add_u32 v4, v8, 7, v9")
    A("v_lshl_add_u32 v4, v10, 10, v4")
    A("v_lshrrev_b32 v10, 1, v7")
    A("v_mul_u32_u24 v10, 6144, v10")
    A("v_add_u32 v4, v4, v10")
    A("v_and_b32 v8, 3, v0")
    A("v_lshl_add_u32 v4, v8, 3, v4")
    A("v_add_u32 v4, 16384, v4")
    A("v_xor_b32 v5, 32, v4")
    ACC = (lambda i, n=1: v(96 + i, n)) if acc_v else a
    for i in range(96):
        A("v_mov_b32 v%d, 0" % (96 + i) if acc_v else "v_accvgpr_write_b32 a%d, 0" % i)
    def XF(p, mt): return 16 + 40 * p + 4 * mt
    def WF(p, nt): return 32 + 40 * p + 4 * nt
    def reads(p, j):
        r = []
        xs = ["ds_read_b128 %s, v%d offset:%d" % (v(XF(p, mt), 4), 2 + j, mt * 2048) for mt in range(4)]
        ws = []
        for nt in range(6):
            seg, t = nt >> 1, nt & 1
            for half in range(2):
                ws.append("ds_read_b64_tr_b16 %s, v%d offset:%d" % (v(WF(p, nt) + 2 * half, 2), 4 + t, j * 12288 + seg * 2048 + half * 512))
        return xs + ws
    def mfmas(p):
        r = []
        if order == 0: idx = [(mt, nt) for nt in range(6) for mt in range(4)]
        else: idx = [(mt, nt) for mt in range(4) for nt in range(6)]
        for mt, nt in idx:
            acc = ACC((mt * 6 + nt) * 4, 4)
            if nt < 4:
                r.append("v_mfma_f32_16x16x32_bf16 %s, %s, %s, %s" % (acc, v(WF(p, nt), 4), v(XF(p, mt), 4), acc))
            else:
                r.append("v_mfma_f32_16x16x32_bf16 %s, %s, %s, %s" % (acc, v(XF(p, mt), 4), v(WF(p, nt), 4), acc))
        return r
    def interleave(ms, rs):
        if noread: return ms
        out = []
        k = 0
        for i, m in enumerate(ms):
            out.append(m)
            want = min(len(rs), -(-(i + 1) * len(rs) // nread))
            while k < want: out.append(rs[k]); k += 1
        return out
    A("s_mov_b32 s30, 0")
    A("s_mov_b32 s31, 0")
    A("s_barrier")
    if stamps:
        A("s_cmp_eq_u32 s3, 0\ns_cbranch_scc0 L_ns1")
        stamp(A, 1, NST, tmp=12)
        A.label("L_ns1")
    if compute:
        for r in reads(0, 0): A(r)
        if noread:
            for r in reads(1, 1): A(r)
    A.label("L_cloop")
    if compute:
        A("s_waitcnt lgkmcnt(0)")
        for l in interleave(mfmas(0), reads(1, 1)): A(l)
        A("s_waitcnt lgkmcnt(0)")
    A("s_add_u32 s30, s30, 1")
    A("s_add_u32 s32, s31, %d" % STAGE)
    A("s_cmp_eq_u32 s32, %d" % (STAGE * NS))
    A("s_cselect_b32 s32, 0, s32")
    A("s_sub_u32 s33, s32, s31")
    A("s_mov_b32 s31, s32")
    for r in (2, 3, 4, 5): A("v_add_u32 v%d, s33, v%d" % (r, r))
    A("s_cmp_eq_u32 s30, 16")
    A("s_cbranch_scc1 L_cdone")
    A("s_barrier")
    if compute:
        for l in interleave(mfmas(1), reads(0, 0)): A(l)
    A("s_branch L_cloop")
    A.label("L_cdone")
    if compute:
        for l in mfmas(1): A(l)
    if stamps:
        A("s_cmp_eq_u32 s3, 0\ns_cbranch_scc0 L_ns2")
        stamp(A, 2, NST, tmp=12)
        A.label("L_ns2")
    A("s_nop 7\ns_nop 7")
    A("s_lshl_b32 s34, s12, 1\ns_add_u32 s34, s34, s14")
    A("s_lshl_b32 s35, s13, 1\ns_add_u32 s35, s35, s15")
    A("s_lshl_b32 s34, s34, 17")
    A("s_lshl_b32 s37, s35, 10\ns_add_u32 s37, s37, s34")
    A("s_lshl_b32 s38, s35, 11\ns_add_u32 s38, s38, s34")
    A("v_lshlrev_b32 v11, 4, v0")
    cnt = 0
    def emit(accs, soff_reg, imm, inst_off=0):
        nonlocal cnt
        b = 16 + 16 * (cnt & 1); cnt += 1
        if acc_v:
            for i in range(4): A("v_cvt_pk_bf16_f32 v%d, v%d, v%d" % (b + 8 + i, 96 + accs[2 * i], 96 + accs[2 * i + 1]))
        else:
            for i in range(8): A("v_accvgpr_read_b32 v%d, a%d" % (b + i, accs[i]))
            for i in range(4): A("v_cvt_pk_bf16_f32 v%d, v%d, v%d" % (b + 8 + i, b + 2 * i, b + 2 * i + 1))
        A("s_add_u32 s36, s%d, %d" % (soff_reg, imm))
        A("buffer_store_dwordx4 %s, v11, s[24:27], s36 offen offset:%d" % (v(b + 8, 4), inst_off))
    for mt in range(4):
        for seg in range(2):
            accs = [(mt * 6 + 2 * seg) * 4 + i for i in range(4)] + [(mt * 6 + 2 * seg + 1) * 4 + i for i in range(4)]
            emit(accs, 37, seg * (4 << 20) + mt * 32768)
    for mp in range(2):
        for t in range(2):
            accs = [((2 * mp) * 6 + 4 + t) * 4 + i for i in range(4)] + [((2 * mp + 1) * 6 + 4 + t) * 4 + i for i in range(4)]
            emit(accs, 38, 2 * (4 << 20) + mp * 65536, t * 1024)
    if stamps:
        A("s_waitcnt vmcnt(0)")
        A("s_cmp_eq_u32 s3, 0\ns_cbranch_scc0 L_ns3")
        stamp(A, 3, NST, tmp=12)
        A.label("L_ns3")
    A("s_endpgm")
    A.label("L_loader")
    A("s_sub_u32 s14, s3, 4")
    A("v_lshrrev_b32 v6, 3, v0")
    A("v_lshrrev_b32 v7, 4, v0")
    A("v_and_b32 v8, 7, v0")
    A("v_xor_b32 v9, v8, v7")
    A("v_lshlrev_b32 v9, 4, v9")
    A("v_lshlrev_b32 v2, 11, v6")
    A("v_add_u32 v2, v2, v9")
    A("s_lshl_b32 s28, s12, 18\ns_lshl_b32 s29, s14, 16\ns_add_u32 s28, s28, s29")
    A("v_add_u32 v2, s28, v2")
    A("v_xor_b32 v3, 64, v2")
    A("v_add_u32 v3, %d, v3" % (16384 - 1024))
    A("v_add_u32 v4, %d, v2" % (2 * 16384 - 2048))
    A("v_add_u32 v5, %d, v3" % (2 * 16384 - 2048))
    A("v_and_b32 v9, 1, v7\nv_lshlrev_b32 v9, 1, v9\nv_xor_b32 v9, v9, v8\nv_lshlrev_b32 v9, 4, v9")
    A("v_mul_u32_u24 v10, 6144, v6")
    A("v_add_u32 v10, v10, v9")
    A("s_mul_i32 s28, s14, %d" % (16 * 6144))
    A("s_lshl_b32 s29, s13, 7\ns_add_u32 s28, s28, s29")
    A("v_add_u32 v10, s28, v10")
    A("v_xor_b32 v16, 64, v10")
    for t in range(1, 6):
        A("v_add_u32 v%d, %d, v%d" % (10 + t, (t & 1) * 8 * 6144 + (t >> 1) * 2048 - 1024 * (t % 3), 16 if t & 1 else 10))
    A("s_lshl_b32 s40, s14, 12")
    A("s_mul_i32 s41, s14, 6144\ns_add_u32 s41, s41, 16384")
    A("s_mov_b32 s42, 0\ns_mov_b32 s43, 0\ns_mov_b32 s44, 0")
    def issue():
        if load:
            A("s_add_u32 m0, s40, s44")
            A("s_nop 0")
            for i in range(4): A("buffer_load_dwordx4 v%d, s[16:19], s42 offen offset:%d lds" % (2 + i, 1024 * i))
            A("s_add_u32 m0, s41, s44")
            A("s_nop 0")
            for t in range(3): A("buffer_load_dwordx4 v%d, s[20:23], s43 offen offset:%d lds" % (10 + t, 1024 * t))
            A("s_add_u32 m0, m0, 3072")
            A("s_nop 0")
            for t in range(3, 6): A("buffer_load_dwordx4 v%d, s[20:23], s43 offen offset:%d lds" % (10 + t, 1024 * (t - 3)))
        A("s_add_u32 s42, s42, 128")
        A("s_add_u32 s43, s43, %d" % (64 * 6144))
        A("s_add_u32 s44, s44, %d" % STAGE)
        A("s_cmp_eq_u32 s44, %d" % (STAGE * NS))
        A("s_cselect_b32 s44, 0, s44")
    for i in range(NS): issue()
    A("s_waitcnt vmcnt(%d)" % (10 * (NS - 1)))
    A("s_barrier")
    A("s_mov_b32 s30, 1")
    A.label("L_lloop")
    A("s_waitcnt vmcnt(%d)" % (10 * (NS - 2)))
    A("s_barrier")
    issue()
    A("s_add_u32 s30, s30, 1")
    A("s_cmp_lt_u32 s30, %d" % (17 - NS))
    A("s_cbranch_scc1 L_lloop")
    for s_ in range(17 - NS, 16):
        A("s_waitcnt vmcnt(%d)" % (10 * (15 - s_)))
        A("s_barrier")
    A.label("L_end")
    A("s_endpgm")
    open(path, "w").write(module([dict(name=NAME + "_kernel", body=A.text(), grid=256, block=512, lds=STAGE * NS, vgpr=96 + 96, accum=192 if acc_v else 96)], single=True))

if __name__ == "__main__":
    gen(3, True, True, path="g1b_f0.s")
    gen(3, True, False, path="g1b_c0.s")
    gen(3, True, False, path="g1b_nr.s", noread=True)
    gen(3, True, False, path="g1b_nrc.s", noread=True, cyc=True)
    gen(3, True, False, path="g1b_nr1.s", noread=True, order=1)
    gen(3, True, True, path="g1b_nrl.s", noread=True)
```

```python
import re

TRANS = ("v_exp_", "v_log_", "v_rcp_", "v_rsq_", "v_sqrt_", "v_sin_", "v_cos_")
REG = re.compile(r"\b([vas])(\d+)\b|\b([vas])\[(\d+):(\d+)\]|\b(vcc|exec|m0|vcc_lo|vcc_hi|scc)\b")

def regs(op):
    out = []
    for m in REG.finditer(op):
        if m.group(1): out.append((m.group(1), int(m.group(2))))
        elif m.group(3): out += [(m.group(3), i) for i in range(int(m.group(4)), int(m.group(5)) + 1)]
        else:
            n = m.group(6)
            if n.startswith("vcc"): out.append(("x", "vcc"))
            else: out.append(("x", n))
    return out

def split_ops(s):
    ops, cur, d = [], "", 0
    for ch in s:
        if ch == "[": d += 1
        if ch == "]": d -= 1
        if ch == "," and d == 0: ops.append(cur.strip()); cur = ""
        else: cur += ch
    if cur.strip(): ops.append(cur.strip())
    return ops

class Ins:
    def __init__(self, text):
        self.text = text
        t = text.split(";")[0].strip()
        p = t.split(None, 1)
        self.mn = p[0]
        ops = split_ops(p[1]) if len(p) > 1 else []
        self.ops = ops
        mn = self.mn
        self.mfma = mn.startswith("v_mfma")
        self.valu = mn.startswith("v_") and not self.mfma
        self.salu = mn.startswith("s_")
        self.vmem = mn.startswith(("buffer_", "global_", "flat_"))
        self.ds = mn.startswith("ds_")
        self.trans = mn.startswith(TRANS)
        self.lds_dma = self.vmem and (" lds" in t or "load_lds" in mn)
        self.dst, self.src = [], []
        self.srcC = []; self.srcAB = []
        self.store_data = []
        if self.mfma:
            self.dst = regs(ops[0]); self.srcAB = regs(ops[1]) + regs(ops[2]); self.srcC = regs(ops[3])
            self.src = self.srcAB + self.srcC
            self.passes = 8 if "32x32x16" in mn else 4
            assert "32x32x16" in mn or "16x16x32" in mn, mn
        elif self.valu:
            nd = 1
            if mn.startswith(("v_add_co", "v_sub_co", "v_addc_co", "v_subb_co", "v_subrev_co", "v_div_scale", "v_mad_u64")): nd = 2
            if mn.startswith(("v_permlane16_swap", "v_permlane32_swap", "v_swap")):
                self.dst = regs(ops[0]) + regs(ops[1]); self.src = list(self.dst)
            elif mn == "v_nop":
                pass
            else:
                for o in ops[:nd]: self.dst += regs(o)
                for o in ops[nd:]: self.src += regs(o)
                if mn.startswith(("v_fmac", "v_dot2c", "v_writelane", "v_pk_fmac")): self.src += self.dst
                if mn.startswith("v_cmpx"): self.dst.append(("x", "exec"))
        elif self.vmem:
            if mn in ("buffer_inv", "buffer_wbl2"): pass
            elif "store" in mn:
                if mn.startswith("buffer"): data = ops[0]; rest = ops[1:]
                else: data = ops[1]; rest = [ops[0]] + ops[2:]
                self.src = regs(data)
                for o in rest: self.src += regs(o)
                if "x3" in mn or "x4" in mn: self.store_data = regs(data)
            elif "atomic" in mn:
                for o in ops: self.src += regs(o)
                if " sc0" in t: self.dst = regs(ops[0])
            elif self.lds_dma:
                for o in ops: self.src += regs(o)
                self.src.append(("x", "m0"))
            else:
                self.dst = regs(ops[0])
                for o in ops[1:]: self.src += regs(o)
        elif self.ds:
            if mn.startswith("ds_write") or mn.startswith("ds_add"):
                for o in ops: self.src += regs(o)
            else:
                self.dst = regs(ops[0])
                for o in ops[1:]: self.src += regs(o)
        elif self.salu:
            if mn.startswith(("s_cmp", "s_cbranch", "s_branch", "s_waitcnt", "s_barrier", "s_nop", "s_endpgm", "s_sleep", "s_setprio", "s_bitcmp")):
                for o in ops: self.src += regs(o)
            else:
                if ops: self.dst = regs(ops[0])
                for o in ops[1:]: self.src += regs(o)
        self.states = 1
        if mn == "s_nop": self.states = int(ops[0], 0) + 1

def need(ins, st):
    n = 0
    def req(kind, r, k):
        nonlocal n
        a = st.get((kind, r))
        if a is not None and a < k: n = max(n, k - a)
    if ins.mfma:
        for r in ins.src: req("valu", r, 2)
        for r in ins.srcAB:
            req("mfma4", r, 8); req("mfma8", r, 12)
        key = ("mfmaD", tuple(ins.srcC), ins.passes)
        for r in ins.srcC:
            ex = st.get(("exact", r))
            for kind, k in (("mfma4", 6), ("mfma8", 10)):
                a = st.get((kind, r))
                if a is not None and a < k and st.get(("sig", r)) != key: n = max(n, k - a)
        for r in ins.dst:
            if r not in ins.srcC:
                req("mfma4", r, 6); req("mfma8", r, 10)
        req("valu", ("x", "exec"), 4)
    else:
        if ins.valu or ins.vmem or ins.ds:
            for r in ins.src + ins.dst:
                req("mfma4", r, 8); req("mfma8", r, 12)
        if ins.valu:
            for r in ins.dst:
                req("rdC4", r, 3); req("rdC8", r, 7); req("stdata", r, 2)
            if not ins.trans:
                for r in ins.src: req("trans", r, 1)
            if ins.mn.startswith("v_permlane") or "dpp" in ins.text or "row_" in ins.text or "quad_perm" in ins.text:
                for r in ins.src: req("valu", r, 2)
            if ins.mn.startswith(("v_readfirstlane", "v_readlane")):
                for r in ins.src:
                    if r[0] == "v": req("valu", r, 1)
                    else: req("valus", r, 4)
            for r in ins.src:
                if r[0] in "sx": req("valus", r, 2)
        if ins.vmem:
            for r in ins.src:
                if r[0] in "sx": req("valus", r, 5)
            if ins.lds_dma: req("salu", ("x", "m0"), 1)
        if ins.vmem or ins.ds:
            for r in ins.dst: req("stdata", r, 1)
            for r in ins.src: req("trans", r, 1)
        if ins.salu:
            for r in ins.src:
                if r[0] in "sx": req("valus", r, 1)
    return n

def advance(st, k):
    out = {}
    for key, a in st.items():
        if key[0] == "sig": out[key] = a
        elif a + k < 24: out[key] = a + k
    return out

def apply(ins, st):
    st = advance(st, ins.states)
    if ins.mfma:
        for r in ins.dst:
            st.pop(("mfma4", r), None); st.pop(("mfma8", r), None)
            st[("mfma%d" % ins.passes, r)] = 0
            st[("sig", r)] = ("mfmaD", tuple(ins.dst), ins.passes)
        for r in ins.srcC: st[("rdC%d" % ins.passes, r)] = 0
    elif ins.valu:
        for r in ins.dst:
            if r[0] in "va":
                st[("valu", r)] = 0
                if ins.trans: st[("trans", r)] = 0
                else: st.pop(("trans", r), None)
            else:
                st[("valus", r)] = 0
                if r == ("x", "exec"): st[("valu", r)] = 0
    elif ins.salu:
        for r in ins.dst:
            if r == ("x", "m0"): st[("salu", r)] = 0
            st.pop(("valus", r), None)
    for r in ins.store_data: st[("stdata", r)] = 0
    return st

def merge(a, b):
    out = dict(a)
    for k, x in b.items():
        if k[0] == "sig":
            if k in out and out[k] != x: out[k] = None
            elif k not in out: out[k] = x
        else: out[k] = min(out.get(k, 99), x)
    return out

def fix(lines, verbose=False):
    snaps = {}
    for it in range(4):
        out = []; st = {}; changed = False; newsn = {}
        dead = False
        for l in lines:
            t = l.split(";")[0].strip()
            if not t or t.startswith("."):
                out.append(l); continue
            if t.endswith(":"):
                lab = t[:-1]
                if dead: st = {}
                dead = False
                if lab in newsn: st = merge(st, newsn[lab])
                if lab in snaps: st = merge(st, snaps[lab])
                out.append(l); continue
            ins = Ins(t)
            n = need(ins, st)
            if n:
                changed = True
                if verbose: print("nop %d before: %s" % (n, t))
                k = n
                while k > 0:
                    q = min(k, 16); out.append("    s_nop %d" % (q - 1)); k -= q
                st = advance(st, n)
            st = apply(ins, st)
            out.append(l)
            if ins.mn.startswith(("s_cbranch", "s_branch")):
                lab = ins.ops[0]
                newsn[lab] = merge(newsn.get(lab, {}), st)
                if ins.mn == "s_branch": dead = True
            if ins.mn == "s_endpgm": dead = True
        lines = out
        snaps = newsn
        if not changed and it > 0: break
    return lines
```

```python
from k9 import *

class Gen10(Gen9):
    def seg(self): return 0
    def o_flag_addr(self, sreg):
        self.A("s_add_u32 s%d, s%d, s%d\ns_lshl_b32 s%d, s%d, 5\ns_add_u32 s%d, s%d, s%d\ns_lshl_b32 s%d, s%d, 7\ns_add_u32 s%d, s%d, 0x%x" % (sreg, S_T0, S_A, sreg, sreg, sreg, sreg, S_HEAD, sreg, sreg, sreg, sreg, WS_OF))
    def g2_setup(self, lo):
        A = self.A; TT = T3; AD = self.G_AD
        A("s_lshl_b32 s%d, s%d, 2\ns_and_b32 s%d, s3, 1\ns_add_u32 s%d, s%d, s%d" % (TT, S_RB2, T0, TT, TT, T0))
        if not lo: A("s_add_u32 s%d, s%d, 2" % (TT, TT))
        A("s_lshl_b32 s%d, s%d, 1\ns_add_u32 s%d, s%d, s%d\ns_lshl_b32 s%d, s%d, 11\ns_add_u32 s%d, s%d, 0x%x\nv_lshl_add_u32 v22, v0, 7, s%d" % (T0, TT, T0, T0, S_HD, T0, T0, T0, T0, WS_OF, T0))
        A("v_lshrrev_b32 v%d, 2, v0\nv_and_b32 v%d, 7, v%d" % (AD + 1, AD + 1, AD + 1))
        A("v_lshrrev_b32 v%d, 1, v%d\nv_lshlrev_b32 v%d, 5, v%d\nv_lshl_add_u32 v%d, v%d, 7, v%d" % (AD + 2, AD + 1, AD + 2, AD + 2, AD, AD + 1, AD + 2))
        A("v_and_b32 v%d, 32, v0\nv_lshl_add_u32 v%d, v%d, 6, v%d\nv_and_b32 v%d, 3, v0\nv_lshl_add_u32 v%d, v%d, 3, v%d" % (AD + 1, AD, AD + 1, AD, AD + 1, AD, AD + 1, AD))
        A("s_lshl_b32 s%d, s%d, 16\ns_add_u32 s%d, s%d, %d\nv_add_u32 v%d, s%d, v%d" % (T0, S_HD, T0, T0, L_WO, AD, T0, AD))
        for nu in range(1, 4): A("v_xor_b32 v%d, %d, v%d" % (AD + nu, 32 * nu, AD))
        A("s_lshl_b32 s%d, s%d, 16\ns_lshl_b32 s%d, s%d, 14\ns_add_u32 s%d, s%d, s%d\ns_add_u32 s%d, s%d, 0x%x" % (T0, TT, T1, S_HD, T0, T0, T1, T0, T0, WS_O))
        A("v_add_u32 v%d, s%d, v1\nv_add_u32 v%d, 0x8000, v%d" % (AD + 4, T0, AD + 5, AD + 4))
    def g2_main(self, bars, late={}, pre=0):
        A = self.A
        ACC, WF, OF, AD = self.G_ACC, self.G_WF, self.G_OF, self.G_AD
        NK = 16; D = self.o.get("D", 5)
        vm = VM(); ld = self.g2_ld
        def emit(l):
            if isinstance(l, tuple): vm.add(l[1]); A(l[2])
            else: A(l)
        for k in range(D):
            for l in ld(k): emit(l)
        for k in range(NK):
            for kk, name in bars:
                if kk == k:
                    A("s_barrier"); self.st(name)
            A("s_waitcnt vmcnt(%d) lgkmcnt(%d)" % (vm.cnt(k), 8 if k + 1 < NK else 0))
            ms = [mf16(ACC + 16 * rt + 4 * nu, WF + 16 * (k % 3) + 4 * nu, OF + 8 * (k % 6) + 4 * rt, (ACC + 16 * rt + 4 * nu) if k else None) for rt in range(2) for nu in range(4)]
            fill = (self.g2_rd(k + 2) if k + 2 < NK else []) + (ld(k + D) if k + D < NK else []) + [("vm", "s", l) for l in late.get(k, [])]
            for l in weave(ms, fill, per=2): emit(l)
        self.st("g2end")
    OUTS = S_E0
    EA = 24
    def g2_end_setup(self):
        A = self.A; TT = T3; E = self.EA
        A("s_lshl_b32 s%d, s3, 12\nv_add_u32 v%d, s%d, v1\nv_xor_b32 v%d, 0x2000, v%d" % (T0, E, T0, E + 1, E))
        A("v_and_b32 v%d, 15, v0\nv_lshrrev_b32 v%d, 3, v0\nv_and_b32 v%d, 2, v%d\nv_lshrrev_b32 v%d, 5, v0\nv_or_b32 v%d, v%d, v%d" % (E + 2, E + 3, E + 3, E + 3, E + 4, E + 3, E + 3, E + 4))
        A("v_and_b32 v%d, 7, v0\nv_xor_b32 v%d, v%d, v%d\nv_lshlrev_b32 v%d, 4, v%d\nv_lshl_add_u32 v%d, v%d, 7, v%d" % (E + 4, E + 3, E + 3, E + 4, E + 3, E + 3, E + 2, E + 2, E + 3))
        A("s_xor_b32 s%d, s%d, 0x2000\nv_add_u32 v%d, s%d, v%d\nv_xor_b32 v%d, 64, v%d" % (T0, T0, E + 2, T0, E + 2, E + 3, E + 2))
        A("v_lshrrev_b32 v%d, 3, v0\nv_xor_b32 v%d, v%d, v%d\nv_lshlrev_b32 v%d, 4, v%d\nv_lshl_add_u32 v%d, v%d, 12, v%d" % (E + 5, E + 4, E + 4, E + 5, E + 4, E + 4, E + 4, E + 5, E + 4))
        A("s_lshl_b32 s%d, s%d, 17\ns_lshl_b32 s%d, s%d, 16\ns_add_u32 s%d, s%d, s%d\ns_lshl_b32 s%d, s%d, 7\ns_add_u32 s%d, s%d, s%d\ns_add_u32 s%d, s%d, 32768" % (S_E0, TT, T1, S_HD, S_E0, S_E0, T1, T1, S_SL, S_E0, S_E0, T1, S_E1, S_E0))
    def g2_send(self):
        A = self.A; ACC, E = self.G_ACC, self.EA
        La = A.newlabel("Lr"); Lb = A.newlabel("Lr")
        A("s_cmp_eq_u32 s%d, 0\ns_cbranch_scc0 %s" % (S_HD, La))
        for nu in range(4): A("ds_write_b128 v%d, %s offset:%d" % (E, v(ACC + 16 + 4 * nu, 4), nu * 1024))
        A("s_branch %s" % Lb)
        A.label(La)
        for nu in range(4): A("ds_write_b128 v%d, %s offset:%d" % (E, v(ACC + 4 * nu, 4), nu * 1024))
        for i in range(16): A("v_mov_b32 v%d, v%d" % (ACC + i, ACC + 16 + i))
        A.label(Lb)
        A("s_waitcnt lgkmcnt(0)")
    def g2_fin(self, before_store=None):
        A = self.A; ACC, E, PR, PKR = self.G_ACC, self.EA, 152, 168
        for nu in range(4): A("ds_read_b128 %s, v%d offset:%d" % (v(PR + 4 * nu, 4), E + 1, nu * 1024))
        for p in range(2):
            A("s_waitcnt lgkmcnt(%d)" % (2 - 2 * p))
            for i in range(8 * p, 8 * p + 8): A("v_add_f32 v%d, v%d, v%d" % (ACC + i, ACC + i, PR + i))
            for i in range(4 * p, 4 * p + 4): A(cvt(PKR + i, ACC + 2 * i, ACC + 2 * i + 1))
        for p in range(2):
            A("v_permlane16_swap_b32 v%d, v%d" % (PKR + 4 * p, PKR + 4 * p + 2))
            A("v_permlane16_swap_b32 v%d, v%d" % (PKR + 4 * p + 1, PKR + 4 * p + 3))
            A("ds_write_b128 v%d, %s" % (E + 2 + p, v(PKR + 4 * p, 4)))
        for p in range(2): A("ds_read_b128 %s, v%d offset:%d" % (v(PR + 4 * p, 4), E + 1, p * 1024))
        if before_store: before_store()
        for p in range(2):
            A("s_waitcnt lgkmcnt(%d)" % (1 - p))
            A("buffer_store_dwordx4 %s, v%d, %s, s%d offen%s" % (v(PR + 4 * p, 4), E + 4, R(S_OUT), self.OUTS + p, self.o["sta"]))

    def halo_phase(self, nh):
        A = self.A; o = self.o
        if not o["bulk"]: return Gen9.halo_phase(self, nh)
        KB = 56
        def rd(i, part):
            base = KB + 8 * i if part == 0 else self.VB + 8 * (i & 1)
            return ["ds_read_b128 %s, %s offset:%d" % (v(base + 4 * f, 4), "v3" if i else "v2", (1 - part) * L_HK + ((8 - i) * 2048 if i else 0) + f * 1024) for f in range(2)]
        for i in range(8):
            for l in rd(i, 0): A(l)
        Ls = A.newlabel("Ls"); Lj = A.newlabel("Ls")
        A("s_cmp_lt_u32 s3, 4\ns_cbranch_scc1 %s" % Ls)
        n1 = o["n1"]
        g = self.wo_groups(32, 22, T4)
        for gg in g[:n1 + 1]:
            for l in gg: A(l)
        A("s_waitcnt vmcnt(%d) lgkmcnt(0)" % n1)
        A("s_barrier")
        self.b1_flag()
        for gg in g[n1 + 1:] + self.wo_groups(0, 8, T4):
            for l in gg: A(l)
        self.st("mid")
        A.label(Ls)
        Lfin = A.newlabel("Lfin"); Lno = A.newlabel("Lno")
        A("s_cmp_eq_u32 s%d, 0\ns_cbranch_scc1 %s" % (S_RB, Lno))
        def mid():
            A("s_waitcnt lgkmcnt(0)")
            for l in rd(0, 1) + rd(1, 1): A(l)
            L2 = A.newlabel("Ls")
            A("s_cmp_lt_u32 s3, 4\ns_cbranch_scc0 %s" % L2)
            A("s_barrier")
            self.st("mid")
            A.label(L2)
        def extra(i):
            if i != 3: return []
            def f():
                L2 = A.newlabel("Ls")
                A("s_cmp_lt_u32 s3, 4\ns_cbranch_scc0 %s" % L2)
                A("buffer_load_dword v253, v252, %s, 0 offen sc1" % R(S_WS))
                A.label(L2)
            return [[], [], [], [f]]
        self.chunk(False, 4, 8, lambda i: KB + 8 * i, lambda i: self.VB + 8 * (i & 1),
                   kwait=lambda i: "s_waitcnt lgkmcnt(%d)" % (14 - 2 * i), mid=mid, vread=lambda i: rd(i, 1))
        A("s_branch %s" % Lfin)
        A.label(Lno)
        A("s_waitcnt lgkmcnt(0)")
        A("s_cmp_lt_u32 s3, 4\ns_cbranch_scc0 %s" % Lfin)
        A("s_barrier")
        A.label(Lfin)

    def tail(self):
        A = self.A; o = self.o
        A("s_cmp_lt_u32 s3, 4\ns_cbranch_scc1 L_lo2")
        self.g2_setup(False)
        self.o_flag_addr(T2)
        A("s_waitcnt vmcnt(2) lgkmcnt(0)")
        A("s_barrier")
        self.st("X")
        A("s_mov_b64 exec, 0xffff")
        A("buffer_load_dword v253, v22, %s, 0 offen sc1" % R(S_WS))
        A("s_mov_b64 exec, -1")
        for gg in self.wo_groups(120, 2, T4):
            for l in gg: A(l)
        for l in self.g2_rd(0) + self.g2_rd(1): A(l)
        self.g2_end_setup()
        A("s_waitcnt vmcnt(3)")
        self.flag(T2)
        A("s_barrier")
        self.st("C3")
        Lok = A.newlabel("Lo")
        A("s_waitcnt vmcnt(3)")
        A("s_mov_b64 exec, 0xffff")
        A("v_cmp_ne_u32 vcc, s%d, v253" % S_N)
        A("s_mov_b64 exec, -1")
        A("s_cbranch_vccz %s" % Lok)
        self.poll(22, 16, 253, sleep=o.get("os", 2))
        A.label(Lok)
        self.st("opoll")
        self.g2_main([(o["c5"], "C5")])
        self.g2_send()
        A("s_barrier")
        self.g2_fin(lambda: A("s_barrier"))
        A("s_barrier")
        A("s_branch L_fin")
        A.label("L_lo2")
        VS, P = 120, self.PA
        def vloads():
            for r4 in range(4):
                A("s_add_u32 s%d, s%d, %d" % (T0, S_VB0, r4 * 4096))
                for ri in range(2):
                    A("buffer_load_dwordx4 %s, v%d, %s, s%d offen offset:%d sc1" % (v(VS + 4 * (2 * r4 + ri), 4), P + 4 + r4, R(S_WS), T0, ri * 2048))
        self.o_flag_addr(T2)
        Lslow = A.newlabel("Lv"); Lj = A.newlabel("Lv")
        A("s_setprio 2")
        if o["bfe"]: A("buffer_load_dword v253, v252, %s, 0 offen sc1" % R(S_WS))
        A("s_waitcnt vmcnt(%d)" % o["bfe"])
        if not o["bfe"]: A("buffer_load_dword v253, v252, %s, 0 offen sc1" % R(S_WS))
        self.flag(T2)
        A("s_waitcnt vmcnt(1)")
        A("v_cmp_ne_u32 vcc, s%d, v253" % S_N)
        A("s_nop 1")
        A("s_cbranch_vccz %s" % Lj)
        self.poll(252, 64, 253, sleep=o.get("bfs", 8))
        A.label(Lj)
        vloads()
        A("s_setprio 0")
        self.st("bfok")
        self.b2_prep()
        A("s_barrier")
        self.st("X")
        for r4 in range(4):
            for ri in range(2):
                A("s_waitcnt vmcnt(%d)" % (7 - 2 * r4 - ri))
                A("ds_write_b128 v%d, %s offset:%d" % (P + 8, v(VS + 4 * (2 * r4 + ri), 4), ri * 4096 + r4 * 1024))
        self.b2_prep2()
        A("s_waitcnt lgkmcnt(0)")
        A("s_barrier")
        self.st("C3")
        if o.get("b2p"): A("s_setprio %d" % o["b2p"])
        self.b2()
        self.st("b2end")
        self.g2_setup(True)
        A("s_mov_b64 exec, 0xffff")
        A("buffer_load_dword v253, v22, %s, 0 offen sc1" % R(S_WS))
        A("s_mov_b64 exec, -1")
        self.g2_end_setup()
        A("s_waitcnt lgkmcnt(0)")
        for l in self.g2_rd(0) + self.g2_rd(1): A(l)
        if o["c5pre"]:
            A("s_barrier")
            self.st("C5")
        self.poll(22, 16, 253, issued=True, sleep=o.get("os", 2))
        self.st("opoll")
        n0 = len(A.lines); self.b2_stores(56, wait=False); sts = [l.strip() for l in A.lines[n0:]]; del A.lines[n0:]
        late = {11 + i: [l] for i, l in enumerate(sts)}
        self.g2_main(([] if o["c5pre"] else [(o["c5l"], "C5")]) + [(o["y1"], "Y1"), (o["z"], "Z")], late=late)
        self.g2_send()
        A("s_barrier")
        self.g2_fin()
        self.epoch()

DEF10 = dict(DEF9, c5=10, y1=5, bfs=20, z=11, c5pre=0, c5l=0, bulk=1, bfe=0, n1=8, wt=1)
if __name__ == "__main__":
    import ast
    if len(sys.argv) > 1:
        for spec in sys.argv[1:]:
            name, kw = spec.split("=", 1)
            kw = dict(DEF10, **ast.literal_eval(kw))
            g = Gen10(diag=kw.pop("diag", True), cyc=kw.pop("cyc", False), opts=kw)
            open("work/%s.s" % name, "w").write(g.build())
    else:
        open("cdna_kernels/%s.s" % NAME, "w").write(Gen10(opts=dict(DEF10, verbose=True)).build())
```

```python
from asmlib import *
import hazard, math, struct, sys

S_X, S_W, S_WO, S_BX, S_HRE, S_HIM, S_OUT, S_WS, S_ST = 28, 32, 36, 40, 44, 48, 52, 56, 60
S_XID, S_FAST, S_VB0, S_KVB, S_HB, S_EP = 64, 65, 66, 68, 69, 70
S_E0, S_E1, S_TT, S_GAM, S_MODE, S_DUM, S_SL, S_RB2 = 72, 73, 74, 75, 76, 77, 78, 79
S_XCD, S_IDX, S_RB, S_G, S_HD, S_A, S_HEAD, S_T0 = 80, 81, 82, 83, 84, 85, 86, 87
S_C, S_N = 88, 89
S_CB = 18
T0, T1, T2, T3, T4, T5, T6, T7 = 90, 91, 92, 93, 94, 95, 96, 97
WS_KV, WS_O, WS_VB, WS_KVF = 0, 8 << 20, 12 << 20, 16 << 20
WS_OF, WS_BF, WS_EP, WS_ID = WS_KVF + (128 << 10), WS_KVF + (384 << 10), WS_KVF + (640 << 10), WS_KVF + (704 << 10)
WS_SIZE = 17 << 20
STAGE = 40960
L_Q, L_XB, L_WO, L_CT, L_HK = 122880, 139264, 32768, 155648, 32768
LDS_BYTES = 163840
SPIN = 1 << 15

def f32(x): return "0x%08x" % struct.unpack("<I", struct.pack("<f", x))[0]
def R(b): return "s[%d:%d]" % (b, b + 3)
def mf16(d, a_, b_, c=None): return "v_mfma_f32_16x16x32_bf16 %s, %s, %s, %s" % (v(d, 4), v(a_, 4), v(b_, 4), "0" if c is None else v(c, 4))
def mf32(d, a_, b_, c=None): return "v_mfma_f32_32x32x16_bf16 %s, %s, %s, %s" % (v(d, 16), v(a_, 4), v(b_, 4), "0" if c is None else v(c, 16))
def cvt(d, a_, b_): return "v_cvt_pk_bf16_f32 v%d, v%d, v%d" % (d, a_, b_)
def weave(main, fill, start=0, per=1):
    out = []; k = 0
    for i, m in enumerate(main):
        out.append(m)
        if i >= start:
            for _ in range(per):
                if k < len(fill): out.append(fill[k]); k += 1
    return out + fill[k:]
class VM:
    def __init__(self): self.ops = []
    def add(self, tag, n=1): self.ops += [tag] * n
    def cnt(self, tag):
        last = max(i for i, t in enumerate(self.ops) if t == tag)
        return len(self.ops) - 1 - last

STAMPS = ["entry", "B0", "kvdone", "C1", "C2", "c0end", "kvpoll", "HB", "mid", "ost", "C3", "opoll", "C5", "g2end", "end"]

class Gen:
    def __init__(self, diag=False, cyc=False, opts=None):
        self.A = Asm(); self.diag = diag; self.cyc = cyc; self.o = opts or {}
        self.LQ = 2 * STAGE if self.o["slot4"] else L_Q
        self.names = list(STAMPS)
        if self.o.get("min"): self.names = ["entry", "preB0"] + ["-"] * 12 + ["end"]
        for old, new in self.o.get("fs", {}).items(): self.names[self.names.index(old)] = new

    def st(self, name):
        sp = self.o.get("spin")
        if sp and sp[0] == name:
            A = self.A; L = A.newlabel("Lsp")
            if name == "end": A("s_waitcnt vmcnt(0)")
            A("s_cselect_b32 s27, 1, 0\ns_mov_b32 s101, s27")
            A.label(L)
            A("%s s[26:27]\ns_waitcnt lgkmcnt(0)\ns_sub_u32 s26, s26, s100\ns_cmp_lt_u32 s26, %d\ns_cbranch_scc1 %s" % ("s_memtime" if self.cyc else "s_memrealtime", sp[1] * (2000 if self.cyc else 100), L))
            A("s_cmp_eq_u32 s101, 1")
        if not self.diag or name not in self.names: return
        A = self.A; idx = self.names.index(name)
        if idx == 0: A("s_mov_b64 s[26:27], s[100:101]")
        else: A("%s s[26:27]\ns_waitcnt lgkmcnt(0)" % ("s_memtime" if self.cyc else "s_memrealtime"))
        A("v_writelane_b32 v254, s26, %d\nv_writelane_b32 v255, s27, %d" % (idx, idx))
    def stamp_store(self):
        if not self.diag: return
        A = self.A; L = A.newlabel("Lst")
        A("s_and_b32 s26, s3, 3\ns_cmp_eq_u32 s26, %d\ns_cbranch_scc0 %s" % (self.o.get("sw", 0), L))
        A("s_lshl_b32 s26, s2, 8\ns_lshr_b32 s27, s3, 2\ns_lshl_b32 s27, s27, 7\ns_add_u32 s26, s26, s27")
        A("v_lshl_add_u32 v253, v0, 3, s26\ns_mov_b64 exec, 0xffff")
        A("buffer_store_dwordx2 v[254:255], v253, %s, 0 offen" % R(S_ST))
        A("s_mov_b64 exec, -1")
        A.label(L)

    def entry(self):
        A = self.A
        if self.diag or self.o.get("spin"): A("%s s[100:101]" % ("s_memtime" if self.cyc else "s_memrealtime"))
        if self.o.get("spin") and self.o["spin"][0] == "start":
            A("s_waitcnt lgkmcnt(0)"); self.st("start")
        A("s_load_dwordx4 s[4:7], s[0:1], 0")
        A("v_lshrrev_b32 v1, 6, v0")
        A("s_cmp_ge_u32 s2, 256\ns_cbranch_scc1 L_end")
        A("v_readfirstlane_b32 s3, v1")
        A("v_and_b32 v0, 63, v0")
        A("s_and_b32 s%d, s2, 7" % S_XCD)
        A("s_lshr_b32 s%d, s2, 3" % S_IDX)
        if self.o["map"] == 2:
            A("s_and_b32 s%d, s%d, 1\ns_lshl_b32 s%d, s%d, 1\ns_add_u32 s%d, s%d, s%d\ns_lshr_b32 s%d, s%d, 1" % (T0, S_IDX, S_RB, S_XCD, S_RB, S_RB, T0, S_G, S_IDX))
        else:
            A("s_and_b32 s%d, s%d, 15\ns_lshr_b32 s%d, s%d, 4\ns_lshl_b32 s%d, s%d, 1\ns_add_u32 s%d, s%d, s%d" % (S_RB, S_IDX, T0, S_IDX, S_G, S_XCD, S_G, S_G, T0))

    def setup(self):
        A = self.A
        A("s_load_dwordx4 s[8:11], s[0:1], 16")
        A("s_load_dwordx4 s[12:15], s[0:1], 48")
        A("s_load_dwordx2 s[16:17], s[0:1], 64")
        A("s_load_dwordx2 s[24:25], s[0:1], 80")
        A("v_lshlrev_b32 v1, 4, v0")
        A("v_mov_b32 v244, 0\nv_mov_b32 v252, 0")
        A("s_lshr_b32 s%d, s3, 1\ns_and_b32 s%d, s%d, 1" % (S_HD, S_HD, S_HD))
        A("s_and_b32 s%d, s3, 1\ns_sub_u32 s%d, 3, s%d\ns_cmp_lt_u32 s3, 4\ns_cselect_b32 s%d, s%d, s%d" % (T0, T1, T0, S_A, T1, T0))
        A("s_lshl_b32 s%d, s%d, 1\ns_add_u32 s%d, s%d, s%d" % (S_HEAD, S_G, S_HEAD, S_HEAD, S_HD))
        A("s_lshl_b32 s%d, s%d, 2" % (S_T0, S_RB))
        A("s_mov_b32 s%d, %s" % (S_C, f32(math.log2(math.e) / math.sqrt(32.0))))
        lr = self.o["g2map"]
        A("s_and_b32 s%d, s%d, %d\ns_lshl_b32 s%d, s%d, %d\ns_and_b32 s%d, s%d, %d\ns_add_u32 s%d, s%d, s%d" % (T0, S_XCD, (16 >> lr) - 1, T0, T0, lr, T1, S_IDX, (1 << lr) - 1, S_RB2, T0, T1))
        A("s_lshr_b32 s%d, s%d, %d\ns_lshl_b32 s%d, s%d, %d\ns_lshr_b32 s%d, s%d, %d\ns_add_u32 s%d, s%d, s%d" % (T0, S_XCD, 4 - lr, T0, T0, 5 - lr, T1, S_IDX, lr, S_SL, T0, T1))
        A("v_mov_b32 v39, 0xff800000")
        for r in range(16):
            m = 0
            for lane in range(64):
                h, q = lane >> 5, lane & 31
                if 16 * ((r >> 2) & 1) + 8 * (r >> 3) + 4 * h + (r & 3) <= q: m |= 1 << lane
            A("s_mov_b32 s%d, 0x%x\ns_mov_b32 s%d, 0x%x" % (T0, m & 0xffffffff, T1, m >> 32))
            A("v_cndmask_b32 v%d, v39, 0, s[%d:%d]" % (40 + r, T0, T1))
        m = sum(1 << (16 * g + i) for g in range(4) for i in range(0, 16, 4) if ((i >> 2) & 1) == (g & 1))
        A("v_mov_b32 v39, 0x3f803f80")
        A("s_mov_b32 s%d, 0x%x\ns_mov_b32 s%d, 0x%x" % (T0, m & 0xffffffff, T1, m >> 32))
        for i in range(4): A("v_cndmask_b32 v%d, 0, v39, s[%d:%d]" % (self.SEL + i, T0, T1))
        A("s_waitcnt lgkmcnt(0)")
        if self.diag:
            A("s_add_u32 s%d, s24, 0x8000000\ns_addc_u32 s%d, s25, 0\ns_and_b32 s%d, s%d, 0xffff\ns_mov_b32 s%d, 0x100000\ns_mov_b32 s%d, 0x20000" % (S_ST, S_ST + 1, S_ST + 1, S_ST + 1, S_ST + 2, S_ST + 3))
        srd(A, S_WO, 8, 1024 * 1024 * 2)
        srd(A, S_BX, 10, 2048 * 1024 * 2)
        srd(A, S_HRE, 12, 1024 * 1024 * 2)
        srd(A, S_HIM, 14, 1024 * 1024 * 2)
        srd(A, S_OUT, 16, 2048 * 2048 * 2)
        srd(A, S_WS, 24, WS_SIZE)
        A("s_add_u32 s%d, s24, 0x%x\ns_addc_u32 s%d, s25, 0" % (S_EP, WS_EP, S_EP + 1))
        if self.o.get("pair"):
            A("s_and_b32 s%d, s%d, 15\ns_xor_b32 s%d, s%d, %d\ns_lshl_b32 s%d, s%d, 1\ns_lshr_b32 s%d, s%d, 4\ns_add_u32 s%d, s%d, s%d" % (S_CB, S_IDX, S_CB, S_CB, self.o.get("cbx", 0), S_CB, S_CB, T0, S_IDX, S_CB, S_CB, T0))
        else:
            A("s_xor_b32 s%d, s%d, %d" % (S_CB, S_IDX, self.o.get("cbx", 0)))

    def code_touch(self):
        A = self.A; L = A.newlabel("Lpc")
        A("s_getpc_b64 s[22:23]")
        A.label(L)
        A("s_lshl_b32 s%d, s%d, 2\ns_add_u32 s%d, s%d, s%d\ns_lshl_b32 s%d, s%d, 8" % (T0, S_IDX, T0, T0, T4, T0, T0))
        A("s_sub_u32 s22, s22, %s-%s_kernel\ns_subb_u32 s23, s23, 0" % (L, NAME))
        A("s_min_u32 s%d, s%d, L_end-%s_kernel-192" % (T0, T0, NAME))
        A("s_add_u32 s22, s22, s%d\ns_addc_u32 s23, s23, 0" % T0)
        for i in range(0, 256, 64): A("s_load_dword s%d, s[22:23], %d" % (S_DUM, i))

    def nonce_load(self): self.A("s_load_dword s%d, s[%d:%d], 0" % (S_N, S_EP, S_EP + 1))
    def nonce_fin(self):
        A = self.A
        A("s_mul_i32 s%d, s%d, 0x9e3779b1\ns_add_u32 s%d, s%d, 0x7f4a7c15" % (S_N, S_N, S_N, S_N))
        A("s_getreg_b32 s%d, hwreg(HW_REG_XCC_ID, 0, 4)\ns_add_u32 s%d, s%d, s%d" % (S_XID, S_XID, S_XID, S_N))

    def flag(self, sreg, val=S_N, fl=" sc1"):
        A = self.A
        A("v_lshl_add_u32 v250, v0, 2, s%d\nv_mov_b32 v251, s%d" % (sreg, val))
        A("s_mov_b32 exec_hi, 0")
        A("buffer_store_dword v251, v250, %s, 0 offen%s" % (R(S_WS), fl))
        A("s_mov_b32 exec_hi, -1")
    def two_ways(self, emit):
        A = self.A
        La = A.newlabel("Lw"); Lb = A.newlabel("Lw")
        A("s_cmp_eq_u32 s%d, 1\ns_cbranch_scc0 %s" % (S_FAST, La))
        emit("")
        A("s_branch %s" % Lb)
        A.label(La)
        emit(" sc1")
        A.label(Lb)

    def poll(self, vaddr, nl, vt, issued=False, sleep=1):
        A = self.A; L = A.newlabel("Lp"); D = A.newlabel("Lpd"); E = A.newlabel("Lpe")
        A("s_mov_b32 s%d, 0" % T6)
        if nl < 64: A("s_mov_b64 exec, 0x%x" % ((1 << nl) - 1))
        if issued: A("s_branch %s" % E)
        A.label(L)
        A("buffer_load_dword v%d, v%d, %s, 0 offen sc1" % (vt, vaddr, R(S_WS)))
        A.label(E)
        A("s_add_u32 s%d, s%d, 1" % (T6, T6))
        A("s_waitcnt vmcnt(0)")
        A("v_cmp_ne_u32 vcc, s%d, v%d" % (S_N, vt))
        A("s_cmp_ge_u32 s%d, %d\ns_cbranch_scc1 %s" % (T6, SPIN, D))
        A("s_cbranch_vccz %s" % D)
        if sleep: A("s_sleep %d" % sleep)
        A("s_branch %s" % L)
        A.label(D)
        if nl < 64: A("s_mov_b64 exec, -1")

    XF0, WF0, ACC = 56, 72, 136
    ELK, ELV, ELQ = 232, 233, 234
    def gemm1_compute(self):
        A = self.A; ACC = self.ACC
        WM, WN = T4, T5
        A("s_and_b32 s%d, s3, 1\ns_lshr_b32 s%d, s3, 1" % (WM, WN))
        A("v_and_b32 v16, 15, v0\nv_lshrrev_b32 v17, 4, v0")
        A("v_lshrrev_b32 v18, 1, v16\nv_xor_b32 v18, v18, v17\nv_lshlrev_b32 v18, 4, v18")
        A("v_lshl_add_u32 v2, v16, 7, v18")
        A("s_lshl_b32 s%d, s%d, 13\nv_add_u32 v2, s%d, v2" % (T0, WM, T0))
        A("v_xor_b32 v3, 64, v2")
        A("v_lshrrev_b32 v18, 2, v0\nv_and_b32 v18, 3, v18")
        A("v_lshrrev_b32 v19, 1, v18\nv_and_b32 v20, 1, v17\nv_lshl_add_u32 v19, v20, 1, v19")
        A("s_lshl_b32 s%d, s%d, 1\nv_xor_b32 v19, s%d, v19\nv_lshlrev_b32 v19, 5, v19" % (T0, WN, T0))
        A("v_lshl_add_u32 v4, v18, 7, v19\nv_lshl_add_u32 v4, v20, 10, v4")
        A("v_lshrrev_b32 v20, 1, v17\nv_mul_u32_u24 v20, 6144, v20\nv_add_u32 v4, v4, v20")
        A("v_and_b32 v18, 3, v0\nv_lshl_add_u32 v4, v18, 3, v4\nv_add_u32 v4, 16384, v4")
        A("v_xor_b32 v5, 32, v4")
        for sl in (1, 2):
            for i in range(4): A("v_add_u32 v%d, %d, v%d" % (2 + 4 * sl + i, sl * STAGE, 2 + i))
        A("v_lshlrev_b32 v17, 9, v17\nv_lshl_add_u32 v22, v16, 4, v17")
        A("v_and_b32 v18, 8, v0\nv_lshl_add_u32 v21, v18, 4, v22")
        A("s_lshl_b32 s%d, s3, 13\ns_lshl_b32 s%d, s3, 12\ns_add_u32 s%d, s%d, %d" % (T1, T2, T2, T2, self.LQ))
        A("v_add_u32 v%d, s%d, v22\nv_add_u32 v%d, s%d, v21\nv_add_u32 v%d, s%d, v22" % (self.ELV, T1, self.ELK, T1, self.ELQ, T2))
        for i in range(96): A("v_mov_b32 v%d, 0" % (ACC + i))
        def XF(p, mt): return self.XF0 + 40 * p + 4 * mt
        def WF(p, nt): return self.WF0 + 40 * p + 4 * nt
        def reads(p, j, sl, nts=range(6)):
            xs = ["ds_read_b128 %s, v%d offset:%d" % (v(XF(p, mt), 4), 2 + 4 * sl + j, mt * 2048) for mt in range(4)]
            ws = ["ds_read_b64_tr_b16 %s, v%d offset:%d" % (v(WF(p, nt) + 2 * half, 2), 4 + 4 * sl + (nt & 1), j * 12288 + (nt >> 1) * 2048 + half * 512) for nt in nts for half in range(2)]
            return xs + ws
        def mfmas(p, nts=range(6), nt_outer=False):
            idx = [(mt, nt) for nt in nts for mt in range(4)] if nt_outer else [(mt, nt) for mt in range(4) for nt in nts]
            return [mf16(ACC + (mt * 6 + nt) * 4, WF(p, nt), XF(p, mt), ACC + (mt * 6 + nt) * 4) if nt < 4 else
                    mf16(ACC + (mt * 6 + nt) * 4, XF(p, mt), WF(p, nt), ACC + (mt * 6 + nt) * 4) for mt, nt in idx]
        if self.o.get("warmall"):
            srd(A, S_X, 4, 2048 * 1024 * 2)
            srd(A, S_W, 6, 1024 * 3072 * 2)
            A("s_lshl_b32 s%d, s2, 2\ns_add_u32 s%d, s%d, s3" % (T0, T0, T0))
            A("v_lshlrev_b32 v16, 7, v0")
            A("s_lshl_b32 s%d, s%d, 12\ns_mul_i32 s%d, s%d, 6144" % (T1, T0, T2, T0))
            A("buffer_load_dword v240, v16, %s, s%d offen" % (R(S_W), T2))
            A("buffer_load_dword v241, v16, %s, s%d offen" % (R(S_X), T1))
            if self.o["warmall"] > 1:
                A("buffer_load_dword v242, v16, %s, s%d offen" % (R(S_BX), T1))
                A("buffer_load_dword v243, v16, %s, s%d offen" % (R(S_WO), T1))
        A("s_mov_b32 s%d, 0" % T3)
        self.st("entry"); self.st("preB0")
        A("s_barrier")
        self.st("B0")
        for r in reads(0, 0, 2): A(r)
        A("s_branch L_g1mid")
        A.label("L_g1loop")
        for j_, sl in enumerate((1, 2, 0)):
            if j_ == 1: A.label("L_g1mid")
            A("s_waitcnt lgkmcnt(0)")
            for l in weave(mfmas(0), reads(1, 1, sl)): A(l)
            A("s_waitcnt lgkmcnt(0)")
            A("s_barrier")
            extra = ["s_add_u32 s%d, s%d, 1" % (T3, T3), "s_cmp_lt_u32 s%d, 5" % T3] if j_ == 2 else []
            for l in weave(mfmas(1), reads(0, 0, (sl + 1) % 3) + extra): A(l)
        A("s_cbranch_scc1 L_g1loop")
        KVN, QN = range(2, 6), range(2)
        A("s_waitcnt lgkmcnt(0)")
        for l in weave(mfmas(0, KVN), reads(1, 1, 1, KVN)): A(l)
        A("s_waitcnt lgkmcnt(0)")
        if self.o["slot4"]:
            for i in range(4): A("v_add_u32 v%d, %d, v%d" % (10 + i, STAGE, 10 + i))
        A("s_barrier")
        for l in weave(mfmas(1, KVN), reads(0, 0, 2, KVN)): A(l)
        A("s_waitcnt lgkmcnt(0)")
        for l in weave(mfmas(0, KVN), reads(1, 1, 2, list(KVN) + list(QN))): A(l)
        A("s_waitcnt lgkmcnt(4)")
        for l in weave(mfmas(1, KVN, True), reads(0, 0, 1, QN)): A(l)
        self.st("kvdone")
        tile = lambda mt, nt: [ACC + (mt * 6 + nt) * 4 + i for i in range(4)]
        free = [WF(0, 2), WF(0, 3), WF(0, 4), WF(0, 5), WF(1, 2), WF(1, 3), WF(1, 4), WF(1, 5)]
        def pack(b, accs): return [cvt(b + i, accs[2 * i], accs[2 * i + 1]) for i in range(4)]
        epi = []
        for mt in range(4):
            epi += pack(free[mt], tile(mt, 2) + tile(mt, 3)) + ["ds_write_b128 v%d, %s offset:%d" % (self.ELK, v(free[mt], 4), (mt >> 1) * 4096 + (mt & 1) * 128)]
        for mp in range(2):
            for t in range(2):
                b = free[4 + 2 * mp + t]
                epi += pack(b, tile(2 * mp, 4 + t) + tile(2 * mp + 1, 4 + t)) + ["ds_write_b128 v%d, %s offset:%d" % (self.ELV, v(b, 4), mp * 4096 + 2048 + t * 256)]
        A("s_waitcnt lgkmcnt(8)")
        for l in weave(mfmas(1, QN), epi, per=5): A(l)
        for l in reads(1, 1, 1, QN): A(l)
        A("s_waitcnt lgkmcnt(8)")
        A("s_barrier")
        self.st("C0")
        for l in mfmas(0, QN): A(l)
        for l in reads(0, 0, 2, QN): A(l)
        A("s_waitcnt lgkmcnt(8)")
        for l in mfmas(1, QN): A(l)
        self.own_addr()
        A("s_waitcnt lgkmcnt(0)")
        for l in mfmas(0, QN): A(l)
        self.own_kv_reads(4, skip=(XF(0, 0), WF(0, 2)))
        for mt in range(4):
            b = 16 + 4 * mt
            for r in tile(mt, 0) + tile(mt, 1): A("v_mul_f32 v%d, s%d, v%d" % (r, S_C, r))
            for l in pack(b, tile(mt, 0) + tile(mt, 1)): A(l)
            A("ds_write_b128 v%d, %s offset:%d" % (self.ELQ, v(b, 4), (mt >> 1) * 2048 + (mt & 1) * 256))
        A("s_waitcnt lgkmcnt(0)")

    def own_addr(self):
        A = self.A
        A("s_lshl_b32 s%d, s%d, 2\ns_add_u32 s%d, s%d, s%d" % (T0, S_HD, T0, T0, S_A))
        A("s_lshl_b32 s%d, s%d, 11\ns_add_u32 s%d, s%d, %d\nv_add_u32 v2, s%d, v1" % (T1, T0, T1, T1, self.LQ, T1))
        A("s_lshl_b32 s%d, s%d, 12\nv_add_u32 v3, s%d, v1" % (T1, T0, T1))
        A("s_lshl_b32 s%d, s%d, 14\nv_add_u32 v6, s%d, v1" % (T1, S_HD, T1))
    def own_kv_reads(self, nt, skip=None):
        A = self.A; KV = 56
        for part in range(2):
            for i in range(nt):
                for f in range(2 * part, 2 * part + 2):
                    A("ds_read_b128 %s, v%d offset:%d" % (v(KV + 16 * i + 4 * f, 4), 6 if i else 3, max(i - 1, 0) * 4096 + f * 1024))
    def q_read(self):
        A = self.A
        A("ds_read_b128 %s, v2\nds_read_b128 %s, v2 offset:1024" % (v(self.Q, 4), v(self.Q + 4, 4)))
        A("s_waitcnt lgkmcnt(0)")

    PID = 229
    RED = L_WO
    mid_hook = None
    post_hook = None
    def pair_tail(self): return 0
    def loader_setup_hook(self): pass
    def loader_tail_hook(self): return 0
    def loader_loop_hook(self, issue): pass
    def loader(self):
        A = self.A; L = T4
        A("s_sub_u32 s%d, s3, 4" % L)
        A("v_lshrrev_b32 v16, 3, v0\nv_lshrrev_b32 v17, 4, v0\nv_and_b32 v18, 7, v0")
        A("v_xor_b32 v19, v18, v17\nv_lshlrev_b32 v19, 4, v19\nv_lshl_add_u32 v2, v16, 11, v19")
        A("s_lshl_b32 s%d, s%d, 18\ns_lshl_b32 s%d, s%d, 16\ns_add_u32 s%d, s%d, s%d" % (T0, S_RB, T1, L, T0, T0, T1))
        A("v_add_u32 v2, s%d, v2" % T0)
        A("v_xor_b32 v3, 64, v2")
        A("v_add_u32 v3, %d, v3" % (16384 - 1024))
        A("v_add_u32 v4, %d, v2" % (2 * 16384 - 2048))
        A("v_add_u32 v5, %d, v3" % (2 * 16384 - 2048))
        A("v_and_b32 v19, 1, v17\nv_lshlrev_b32 v19, 1, v19\nv_xor_b32 v19, v19, v18\nv_lshlrev_b32 v19, 4, v19")
        A("v_mul_u32_u24 v6, 6144, v16\nv_add_u32 v6, v6, v19")
        A("s_mul_i32 s%d, s%d, %d\ns_lshl_b32 s%d, s%d, 7\ns_add_u32 s%d, s%d, s%d" % (T0, L, 16 * 6144, T1, S_G, T0, T0, T1))
        A("v_add_u32 v6, s%d, v6" % T0)
        A("v_xor_b32 v12, 64, v6")
        for t in range(1, 6):
            A("v_add_u32 v%d, %d, v%d" % (6 + t, (t & 1) * 8 * 6144 + (t >> 1) * 2048 - 1024 * (t % 3), 12 if t & 1 else 6))
        LX, LW, OX, OW, SL = 98, 99, T6, T7, T5
        A("s_lshl_b32 s%d, s%d, 12" % (LX, L))
        A("s_mul_i32 s%d, s%d, 6144\ns_add_u32 s%d, s%d, 16384" % (LW, L, LW, LW))
        cg, crb, cx = self.o["rotf"]
        A("s_mul_i32 s%d, s%d, %d" % (OX, S_XCD, 128 * cx))
        if cg: A("s_mul_i32 s%d, s%d, %d\ns_add_u32 s%d, s%d, s%d" % (T0, S_G, 128 * cg, OX, OX, T0))
        if crb: A("s_mul_i32 s%d, s%d, %d\ns_add_u32 s%d, s%d, s%d" % (T0, S_RB, 128 * crb, OX, OX, T0))
        A("s_and_b32 s%d, s%d, 2047" % (OX, OX))
        A("s_mul_i32 s%d, s%d, 3072\ns_mov_b32 s%d, %d" % (OW, OX, SL, 2 * STAGE))
        def issue():
            A("s_add_u32 m0, s%d, s%d" % (LX, SL))
            for i in range(4): A("buffer_load_dwordx4 v%d, %s, s%d offen offset:%d lds" % (2 + i, R(S_X), OX, 1024 * i))
            A("s_add_u32 m0, s%d, s%d" % (LW, SL))
            for t in range(3): A("buffer_load_dwordx4 v%d, %s, s%d offen offset:%d lds" % (6 + t, R(S_W), OW, 1024 * t))
            A("s_add_u32 m0, m0, 3072")
            for t in range(3, 6): A("buffer_load_dwordx4 v%d, %s, s%d offen offset:%d lds" % (6 + t, R(S_W), OW, 1024 * (t - 3)))
            A("s_add_u32 s%d, s%d, 128\ns_and_b32 s%d, s%d, 2047\ns_mul_i32 s%d, s%d, 3072" % (OX, OX, OX, OX, OW, OX))
            A("s_add_u32 s%d, s%d, %d" % (SL, SL, STAGE))
            A("s_cmp_eq_u32 s%d, %d" % (SL, STAGE * 3))
            A("s_cselect_b32 s%d, 0, s%d" % (SL, SL))
        A("s_waitcnt lgkmcnt(0)")
        srd(A, S_X, 4, 2048 * 1024 * 2)
        srd(A, S_W, 6, 1024 * 3072 * 2)
        issue()
        issue()
        self.setup()
        self.nonce_load()
        self.code_touch()
        if self.o["sp0"]:
            A("s_lshl_b32 s%d, s2, 2\ns_add_u32 s%d, s%d, s%d\ns_lshl_b32 s%d, s%d, 11\ns_add_u32 s4, s8, s%d\ns_addc_u32 s5, s9, 0" % (T0, T0, T0, T4, T0, T0, T0))
            A("s_lshl_b32 s%d, s%d, 2\ns_add_u32 s%d, s%d, s%d\ns_lshl_b32 s%d, s%d, 4\ns_add_u32 s%d, s%d, s%d\ns_lshl_b32 s%d, s%d, 11\ns_add_u32 s6, s10, s%d\ns_addc_u32 s7, s11, 0" % (T0, S_IDX, T0, T0, T4, T0, T0, T0, T0, S_XCD, T0, T0, T0))
            A("s_cmp_lt_u32 s%d, 2\ns_cselect_b32 s%d, 16, 11\ns_lshl_b32 s%d, s%d, s%d" % (T4, T0, T0, S_IDX, T0))
            A("s_bitcmp1_b32 s%d, 0\ns_cselect_b32 s8, s14, s12\ns_cselect_b32 s9, s15, s13\ns_add_u32 s8, s8, s%d\ns_addc_u32 s9, s9, 0" % (T4, T0))
        A("s_mov_b32 s%d, 0\ns_mov_b32 s19, 0" % S_XID)
        A("s_and_b32 s%d, s3, 1\ns_lshl_b32 s%d, s%d, 5\ns_add_u32 s%d, s%d, s%d\ns_lshl_b32 s%d, s%d, 1\ns_add_u32 s%d, s%d, s%d" % (T1, S_KVB, S_HEAD, S_KVB, S_KVB, T1, T1, S_RB, S_KVB, S_KVB, T1))
        A("s_add_u32 s%d, s%d, s3\ns_sub_i32 s%d, s%d, 8" % (T0, T1, S_HB, T0))
        A("s_max_i32 s%d, s%d, 0" % (T0, S_HB))
        A("s_lshl_b32 s%d, s%d, 6\ns_add_u32 s%d, s%d, s%d" % (T1, S_G, T0, T0, T1))
        A("s_lshl_b32 s%d, s%d, 7\ns_add_u32 s%d, s%d, 0x%x\nv_lshl_add_u32 v252, v0, 12, s%d" % (T1, T0, T1, T1, WS_KVF, T1))
        A("s_lshl_b32 s%d, s%d, 13\ns_lshl_b32 s%d, s%d, 12" % (S_E0, T0, S_E1, L))
        if self.o["kfast"]:
            A("s_add_u32 s%d, s%d, 1\nv_add_u32 v26, s%d, v0\nv_min_u32 v26, 15, v26\ns_lshl_b32 s%d, s%d, 4\nv_add_u32 v26, s%d, v26" % (T1, S_RB, T1, T1, S_G, T1))
            A("v_lshlrev_b32 v26, 7, v26\nv_add_u32 v26, 0x%x, v26" % WS_ID)
            A("s_lshl_b32 s%d, s%d, 7\ns_add_u32 s%d, s%d, 0x%x\nv_writelane_b32 v26, s%d, 2" % (T1, S_KVB, T1, T1, WS_KVF, T1))
            A("s_lshl_b32 s%d, s%d, 13\nv_lshl_add_u32 v13, v0, 7, s%d" % (T1, S_KVB, T1))
        self.loader_setup_hook()
        self.st("entry"); self.st("preB0")
        A("s_mov_b32 s%d, 0" % T3)
        A.label("L_lloop")
        A("s_waitcnt vmcnt(10)")
        A("s_barrier")
        issue()
        self.loader_loop_hook(issue)
        Lh = A.newlabel("Lid")
        A("s_cmp_eq_u32 s%d, 3\ns_cbranch_scc0 %s" % (T3, Lh))
        A("s_waitcnt lgkmcnt(0)")
        self.nonce_fin()
        if self.o["kfast"] or self.o.get("kflag"):
            A("s_cmp_eq_u32 s3, 4\ns_cbranch_scc0 %s" % Lh)
            A("s_lshl_b32 s%d, s%d, 4\ns_add_u32 s%d, s%d, s%d\ns_lshl_b32 s%d, s%d, 7\ns_add_u32 s%d, s%d, 0x%x" % (T0, S_G, T0, T0, S_RB, T0, T0, T0, T0, WS_ID))
            self.flag(T0, S_XID)
        if self.o["ofast"]:
            A("s_cmp_eq_u32 s3, 4\ns_cbranch_scc0 %s" % Lh)
            A("s_lshl_b32 s%d, s%d, 4\ns_add_u32 s%d, s%d, s%d\ns_lshl_b32 s%d, s%d, 7\ns_add_u32 s%d, s%d, 0x%x" % (T0, S_RB2, T0, T0, S_SL, T0, T0, T0, T0, WS_ID))
            self.flag(T0, S_XID)
        A.label(Lh)
        self.spf()
        Lc = A.newlabel("Lct")
        A("s_cmp_eq_u32 s%d, %d\ns_cbranch_scc0 %s" % (T3, self.o.get("cti", 11), Lc))
        self.code_touch()
        if self.o.get("kflag"):
            for i in range(2):
                A("s_add_u32 s%d, s%d, %d\ns_min_u32 s%d, s%d, 15\ns_lshl_b32 s%d, s%d, 4\ns_add_u32 s%d, s%d, s%d\ns_lshl_b32 s%d, s%d, 7\ns_add_u32 s%d, s%d, 0x%x" % (T0, S_RB, i + 1, T0, T0, T1, S_G, T0, T0, T1, T0, T0, T0, T0, WS_ID))
                A("s_load_dword s%d, s[24:25], s%d" % (20 + i, T0))
            A("s_lshl_b32 s%d, s%d, 7\ns_add_u32 s%d, s%d, 0x%x" % (T0, S_KVB, T0, T0, WS_KVF + 60))
            A("s_load_dwordx2 s[14:15], s[24:25], s%d" % T0)
        A.label(Lc)
        A("s_add_u32 s%d, s%d, 1" % (T3, T3))
        s4 = self.o["slot4"]
        A("s_cmp_lt_u32 s%d, %d" % (T3, 13 if s4 else 14))
        A("s_cbranch_scc1 L_lloop")
        if s4:
            A("s_mov_b32 s%d, %d" % (SL, 3 * STAGE))
            issue()
        if self.o.get("pair"):
            La = A.newlabel("Lt"); Lb = A.newlabel("Lt")
            n = self.pair_tail()
            A("s_bitcmp1_b32 s%d, 0\ns_cbranch_scc1 %s" % (S_G, La))
            A("s_waitcnt vmcnt(%d)\ns_barrier\ns_waitcnt vmcnt(%d)\ns_barrier\ns_branch %s" % (10 + n, n, Lb))
            A.label(La)
            n += self.xb_fetch()
            A("s_waitcnt vmcnt(%d)\ns_barrier\ns_waitcnt vmcnt(%d)\ns_barrier" % (10 + n, n))
            A.label(Lb)
        else:
            n = self.loader_tail_hook()
            if self.o["kfast"]:
                A("s_mov_b64 exec, 7")
                A("buffer_load_dword v27, v26, %s, 0 offen sc1" % R(S_WS))
                A("s_mov_b64 exec, -1")
                A("buffer_load_dword v249, v13, %s, 0 offen" % R(S_WS))
                n = 2
            if s4:
                A("s_waitcnt vmcnt(%d)" % (20 + n))
                A("s_barrier")
            A("s_waitcnt vmcnt(%d)" % (10 + n))
            A("s_barrier")
            A("s_waitcnt vmcnt(%d)" % n)
            A("s_barrier")
        self.st("B0")
        if self.o["kfast"]:
            A("s_waitcnt vmcnt(1)")
            A("s_mov_b64 exec, 3")
            A("v_cmp_ne_u32 vcc, s%d, v27" % S_XID)
            A("s_mov_b64 exec, -1")
            A("s_cmp_eq_u64 vcc, 0\ns_cselect_b32 s%d, 1, 0" % S_FAST)

    def spf(self):
        A = self.A
        if not self.o["sp0"]: return
        per = self.o["spn"]; Lq = A.newlabel("Lsp")
        A("s_cmp_ge_u32 s%d, %d\ns_cbranch_scc0 %s" % (T3, self.o["sp0"], Lq))
        A("s_cmp_lt_u32 s19, %d\ns_cbranch_scc0 %s" % (self.o["spi"], Lq))
        for i in range(per): A("s_load_dwordx2 s[%d:%d], s[4:5], %d" % (10 + 2 * (i & 1), 11 + 2 * (i & 1), 60 + 128 * i))
        A("s_add_u32 s4, s4, %d\ns_addc_u32 s5, s5, 0" % (128 * per))
        A("s_add_u32 s19, s19, 1\ns_and_b32 s%d, s19, %d\ns_cbranch_scc1 %s" % (T0, 16 // per - 1, Lq))
        A("s_mov_b64 s[4:5], s[6:7]\ns_add_u32 s6, s6, 0x4000\ns_addc_u32 s7, s7, 0")
        A("s_load_dword s10, s[8:9], 0")
        A.label(Lq)

    def kv_publish(self):
        A = self.A; ST = 120
        A("s_and_b32 s%d, s3, 3\ns_lshl_b32 s%d, s%d, 13\nv_add_u32 v4, s%d, v1" % (T0, T0, T0, T0))
        self.own_addr()
        A("s_lshl_b32 s%d, s%d, 13\ns_add_u32 s%d, s%d, 4096" % (T0, S_KVB, T1, T0))
        A("s_lshl_b32 s%d, s%d, 7\ns_add_u32 s%d, s%d, 0x%x" % (T2, S_KVB, T2, T2, WS_KVF))
        A("s_waitcnt lgkmcnt(0)")
        if self.o.get("kflag"):
            A("s_cmp_eq_u32 s20, s%d\ns_cselect_b32 s%d, 1, 0\ns_cmp_eq_u32 s21, s%d\ns_cselect_b32 s%d, s%d, 0" % (S_XID, S_FAST, S_XID, S_FAST, S_FAST))
        A("s_barrier")
        self.st("C0")
        for i in range(8): A("ds_read_b128 %s, v4 offset:%d" % (v(ST + 4 * i, 4), i * 1024))
        def emit(fl):
            for i in range(8):
                A("s_waitcnt lgkmcnt(%d)" % (7 - i))
                A("buffer_store_dwordx4 %s, v1, %s, s%d offen offset:%d%s" % (v(ST + 4 * i, 4), R(S_WS), T0 + (i >> 2), (i & 3) * 1024, fl))
        if self.o["kfast"]: self.two_ways(emit)
        else: emit(" sc1")
        self.st("kvdone")

    def halo_fetch(self):
        A = self.A; L = A.newlabel("Lhf")
        A("s_cmp_lt_i32 s%d, 0\ns_cbranch_scc1 %s" % (S_HB, L))
        self.poll(252, 2, 253, sleep=0)
        self.st("kvpoll")
        for part in range(2):
            for q in range(4):
                A("s_add_u32 m0, s%d, %d\ns_add_u32 s%d, s%d, %d" % (S_E1, (1 - part) * L_HK + (q & 1) * 2048 + (q >> 1) * 16384, T1, S_E0, part * 2048 + (q & 1) * 4096 + (q >> 1) * 32 * 8192))
                for i in range(2): A("buffer_load_dwordx4 v1, %s, s%d offen offset:%d sc1 lds" % (R(S_WS), T1, i * 1024))
        A.label(L)

    Q, O, MK, SB, CI, VB, SEL, LS = 16, 24, 40, 120, 168, 184, 236, 8
    M, AL, TA, TB = 12, 13, 4, 5
    def maxops(self, b, first_tile, first_chunk):
        TA, TB = self.TA, self.TB; r = []
        for j in range(4):
            if first_tile and j == 0:
                r.append("v_max_f32 v%d, v%d, v%d" % (TA, b, b + 1) if first_chunk else "v_max3_f32 v%d, v%d, v%d, v%d" % (TA, self.M, b, b + 1))
                r.append("v_max_f32 v%d, v%d, v%d" % (TB, b + 2, b + 3))
            else:
                r.append("v_max3_f32 v%d, v%d, v%d, v%d" % (TA, TA, b + 4 * j, b + 4 * j + 1))
                r.append("v_max3_f32 v%d, v%d, v%d, v%d" % (TB, TB, b + 4 * j + 2, b + 4 * j + 3))
        return r

    def chunk(self, first, nmin, nmax, Kreg, Vreg, kwait=None, kextra=None, mid=None, vread=None, extra=None):
        A = self.A; Q, O, N, CI, LS, M, AL, TA, TB = self.Q, self.O, T5, self.CI, self.LS, self.M, self.AL, self.TA, self.TB
        S = lambda i: self.SB + 16 * (i % 3)
        exits = {}
        for i in range(nmax):
            if i >= nmin:
                exits[i] = A.newlabel("Lh"); A("s_cmp_gt_u32 s%d, %d\ns_cbranch_scc0 %s" % (N, i, exits[i]))
            if kwait: A(kwait(i))
            A(mf32(S(i), Kreg(i), Q, self.MK if i == 0 else None))
            if kextra:
                for l in kextra(i): A(l)
            mx = self.maxops(S(i - 2), i == 2, first) if i >= 2 else []
            for l in mx[:4]: A(l)
            A(mf32(S(i), Kreg(i) + 4, Q + 4, S(i)))
            for l in mx[4:]: A(l)
        Lm = A.newlabel("Lh")
        for n in range(nmax, nmin - 1, -1):
            if n < nmax: A.label(exits[n])
            for i in range(max(0, n - 2), n):
                for l in self.maxops(S(i), i == 0, first): A(l)
            if n > nmin: A("s_branch %s" % Lm)
        A.label(Lm)
        A("v_max_f32 v%d, v%d, v%d" % (TA, TA, TB))
        A("v_mov_b32 v%d, v%d" % (TB, TA))
        if mid: mid()
        A("v_permlane32_swap_b32 v%d, v%d" % (TA, TB))
        A("v_max_f32 v%d, v%d, v%d" % (TA, TA, TB))
        for r in range(16): A("v_sub_f32 v%d, v%d, v%d" % (S(0) + r, self.MK + r, TA))
        if not first: A("v_sub_f32 v%d, v%d, v%d" % (AL, M, TA))
        else: A("v_mov_b32 v%d, v%d" % (M, TA))
        A("v_sub_f32 v%d, 0, v%d" % (CI, TA))
        A(mf32(S(0), Kreg(0), Q, S(0)))
        if not first: A("v_exp_f32 v%d, v%d" % (AL, AL))
        for r in range(1, 6): A("v_mov_b32 v%d, v%d" % (CI + r, CI))
        A(mf32(S(0), Kreg(0) + 4, Q + 4, S(0)))
        for r in range(6, 16): A("v_mov_b32 v%d, v%d" % (CI + r, CI))
        if not first:
            A("v_mul_f32 v%d, v%d, v%d" % (LS, LS, AL))
            for r in range(16): A("v_mul_f32 v%d, v%d, v%d" % (O + r, O + r, AL))
        def pv(i, m): return mf32(O, Vreg(i) + 4 * m, S(i) + 8 * m, None if (first and i == 0 and m == 0) else O)
        def sm(i, m): return mf16(LS, self.SEL, S(i) + 8 * m, None if (first and i == 0 and m == 0) else LS)
        exits = {}
        for i in range(nmax):
            if i >= nmin:
                exits[i] = A.newlabel("Lh"); A("s_cmp_gt_u32 s%d, %d\ns_cbranch_scc0 %s" % (N, i, exits[i]))
            b = S(i)
            E = ["v_exp_f32 v%d, v%d" % (b + r, b + r) for r in range(16)]
            C = [cvt(b + 8 * (r >> 2) + (r & 3), b + 2 * r, b + 2 * r + 1) for r in range(8)]
            nx = [mf32(S(i + 1), Kreg(i + 1), Q, CI), mf32(S(i + 1), Kreg(i + 1) + 4, Q + 4, S(i + 1))] if i + 1 < nmax else [None, None]
            ex = (extra(i) if extra else []) + [[], [], [], []]
            vr = vread(i + 1) if (vread and i >= 1 and i + 1 < nmax) else []
            seq = E[0:2] + [pv(i - 1, 1) if i else None] + E[2:3] + ex[0] + E[3:5] + [nx[0]] + vr + E[5:7] + [sm(i - 1, 1) if i else None] + E[7:8] + ex[1] + C[0:4] + [nx[1]]
            seq += E[8:11] + ex[2] + (["s_waitcnt lgkmcnt(%d)" % (2 if i + 1 < nmax else 0)] if vread else []) + [pv(i, 0)] + E[11:14] + [sm(i, 0)] + E[14:16] + ex[3] + C[4:8]
            for l in seq:
                if l is None: continue
                if callable(l): l()
                else: A(l)
        Le = A.newlabel("Lh")
        for n in range(nmax, nmin - 1, -1):
            if n < nmax: A.label(exits[n])
            A(pv(n - 1, 1)); A(sm(n - 1, 1))
            if n > nmin: A("s_branch %s" % Le)
        A.label(Le)

    def chunk0(self, lo):
        A = self.A
        A("s_add_u32 s%d, s%d, 1" % (T5, S_A))
        if lo: self.chunk(True, 3, 4, lambda i: 56 + 16 * i, lambda i: 64 + 16 * i)
        else: self.chunk(True, 1, 2, lambda i: 56 + 16 * i, lambda i: 64 + 16 * i)

    def halo_prep(self):
        A = self.A
        A("s_cmp_eq_u32 s%d, 1\ns_cselect_b32 s%d, 4, s%d\ns_cselect_b32 s%d, 0, -1" % (S_RB, T0, S_A, T2))
        A("s_sub_u32 s%d, 8, s%d" % (T5, T0))
        A("s_lshl_b32 s%d, s%d, 14\nv_add_u32 v3, s%d, v1\ns_lshl_b32 s%d, s%d, 11\nv_add_u32 v2, s%d, v3" % (T1, S_HD, T1, T0, T0, T0))
        A("s_and_b32 s%d, s%d, 0xff800000" % (T2, T2))
        for r in range(16): A("v_bfi_b32 v%d, v%d, 0, s%d" % (self.MK + r, self.MK + r, T2))
        A("v_lshrrev_b32 v14, 3, v0\nv_lshrrev_b32 v15, 4, v0\nv_lshlrev_b32 v15, 1, v15\nv_and_b32 v248, 7, v0\nv_xor_b32 v15, v15, v248")
        A("v_lshlrev_b32 v15, 4, v15\nv_lshl_add_u32 v14, v14, 11, v15")
        A("s_lshl_b32 s%d, s%d, 7\nv_add_u32 v14, s%d, v14" % (T0, S_SL, T0))
        A("v_add_u32 v15, %d, v14" % (16384 - 1024))
        A("v_and_b32 v6, 16, v0\nv_lshlrev_b32 v6, 11, v6")
        A("v_and_b32 v7, 15, v0\nv_lshl_add_u32 v6, v7, 4, v6\nv_and_b32 v7, 32, v0\nv_lshl_add_u32 v6, v7, 3, v6")
        A("s_add_u32 s%d, s%d, s%d\ns_lshl_b32 s%d, s%d, 16\ns_lshl_b32 s%d, s%d, 10\ns_add_u32 s%d, s%d, s%d\ns_add_u32 s%d, s%d, 0x%x" % (T0, S_T0, S_A, T1, T0, T2, S_HEAD, T1, T1, T2, T1, T1, WS_O))
        A("v_add_u32 v6, s%d, v6" % T1)

    def wo_groups(self, first, per, wreg):
        g = [["s_mul_i32 s%d, s%d, %d\ns_add_u32 s%d, s%d, %d\ns_lshl_b32 s%d, s%d, 10\ns_add_u32 m0, s%d, %d\ns_lshl_b32 s%d, s%d, 14" % (S_E0, wreg, per, S_E0, S_E0, first, S_E1, S_E0, S_E1, L_WO, S_E0, S_E0)]]
        for i in range(per):
            if i & 1: g.append(["buffer_load_dwordx4 v15, %s, s%d offen offset:1024 lds" % (R(S_WO), S_E0), "s_add_u32 m0, m0, 2048", "s_add_u32 s%d, s%d, 32768" % (S_E0, S_E0)])
            else: g.append(["buffer_load_dwordx4 v14, %s, s%d offen lds" % (R(S_WO), S_E0)])
        return g

    def halo(self, dm):
        A = self.A; KB = 56
        def rd(i, part):
            base = KB + 8 * i if part == 0 else self.VB + 8 * (i & 1)
            return ["ds_read_b128 %s, %s offset:%d" % (v(base + 4 * f, 4), "v3" if i else "v2", (1 - part) * L_HK + ((8 - i) * 2048 if i else 0) + f * 1024) for f in range(2)]
        for i in range(6):
            for l in rd(i, 0): A(l)
        def mid():
            A("s_waitcnt lgkmcnt(0)")
            for l in rd(0, 1) + rd(1, 1): A(l)
            if self.mid_hook: self.mid_hook()
            A("s_barrier")
            self.st("mid")
            if self.post_hook: self.post_hook()
        self.chunk(False, 4, 8, lambda i: KB + 8 * i, lambda i: self.VB + 8 * (i & 1),
                   kwait=lambda i: "s_waitcnt lgkmcnt(%d)" % min(10, 14 - 2 * i), kextra=lambda i: rd(i + 6, 0) if i < 2 else [],
                   mid=mid, vread=lambda i: rd(i, 1), extra=lambda i: dm[4 * i:4 * i + 4])

    def o_store(self):
        A = self.A
        O, LS, PKR = self.O, self.LS, self.CI
        A("v_rcp_f32 v%d, v%d" % (LS, LS))
        for h in range(2):
            for r in range(8 * h, 8 * h + 8): A("v_mul_f32 v%d, v%d, v%d" % (O + r, O + r, LS))
            for r in range(4): A(cvt(PKR + 4 * h + r, O + 8 * h + 2 * r, O + 8 * h + 2 * r + 1))
        def emit(fl):
            for h in range(2): A("buffer_store_dwordx4 %s, v6, %s, 0 offen offset:%d%s" % (v(PKR + 4 * h, 4), R(S_WS), 512 * h, fl))
        if self.o["ofast"]: self.two_ways(emit)
        else: emit(" sc1")

    def o_touch(self):
        A = self.A
        A("s_lshl_b32 s%d, s%d, 11\ns_add_u32 s%d, s%d, 0x%x\nv_lshl_add_u32 v248, v0, 7, s%d" % (T0, S_RB, T0, T0, WS_ID, T0))
        A("s_lshl_b32 s%d, s%d, 4\ns_add_u32 s%d, s%d, s%d\ns_lshl_b32 s%d, s%d, 7\ns_add_u32 s%d, s%d, 0x%x\nv_writelane_b32 v248, s%d, 16" % (T0, S_RB, T0, T0, S_G, T0, T0, T0, T0, WS_OF, T0))
        A("s_mov_b64 exec, 0x1ffff")
        A("buffer_load_dword v249, v248, %s, 0 offen sc1" % R(S_WS))
        A("s_mov_b64 exec, -1")
        A("v_and_b32 v248, 1, v0\nv_lshl_add_u32 v248, v248, 9, v6")
        A("s_mov_b32 exec_lo, 0x03030303\ns_mov_b32 exec_hi, 0x03030303")
        A("buffer_load_dword v7, v248, %s, 0 offen" % R(S_WS))
        A("s_mov_b64 exec, -1")
    def o_check(self):
        A = self.A
        A("s_mov_b64 exec, 0xffff")
        A("v_cmp_ne_u32 vcc, s%d, v249" % S_XID)
        A("s_mov_b64 exec, -1")
        A("s_cmp_eq_u64 vcc, 0\ns_cselect_b32 s%d, 1, 0" % S_FAST)

    def epoch(self):
        A = self.A; L = A.newlabel("Lep")
        A("s_or_b32 s%d, s2, s3\ns_cbranch_scc1 %s" % (T0, L))
        A("s_mov_b32 s%d, 0x%x" % (T0, WS_EP))
        self.flag(T0)
        A.label(L)

    A1, C2, BA = 200, 208, 240
    def xb_fetch(self):
        A = self.A; L = T4
        A("s_and_b32 s%d, s3, 3" % L)
        A("v_and_b32 v120, 12, v0\nv_lshlrev_b32 v120, 16, v120")
        A("v_lshrrev_b32 v121, 4, v0\nv_lshl_add_u32 v120, v121, 16, v120")
        A("v_and_b32 v121, 1, v121\nv_and_b32 v122, 3, v0\nv_xor_b32 v121, v121, v122\nv_lshl_add_u32 v120, v121, 4, v120")
        A("s_lshl_b32 s%d, s%d, 14\ns_lshl_b32 s%d, s%d, 11\ns_add_u32 s%d, s%d, s%d\ns_lshl_b32 s%d, s%d, 6\ns_add_u32 s%d, s%d, s%d" % (T0, L, T1, S_XCD, T0, T0, T1, T1, S_CB, T0, T0, T1))
        A("s_lshl_b32 s%d, s%d, 12\ns_add_u32 m0, s%d, %d" % (T1, L, T1, L_XB))
        for i in range(4):
            A("buffer_load_dwordx4 v120, %s, s%d offen offset:%d lds" % (R(S_BX), T0, 1024 * i))
            if i < 3: A("s_add_u32 s%d, s%d, 0x%x" % (T0, T0, (1 << 20) - 1024))
        A("v_lshrrev_b32 v121, 2, v0\nv_and_b32 v122, 48, v1")
        A("s_cmp_lt_u32 s%d, 2\ns_cselect_b32 s%d, 16, 11" % (L, T1))
        A("v_lshlrev_b32 v121, s%d, v121\nv_add_u32 v121, v121, v122" % T1)
        A("s_lshl_b32 s%d, 16, s%d\ns_sub_u32 s%d, s%d, 1024" % (T2, T1, T2, T2))
        A("s_lshl_b32 s%d, s%d, 11\ns_add_u32 m0, s%d, %d" % (T1, L, T1, L_CT))
        La = A.newlabel("Lct"); Lb = A.newlabel("Lct")
        A("s_bitcmp1_b32 s3, 0\ns_cbranch_scc1 %s" % La)
        A("buffer_load_dwordx4 v121, %s, 0 offen lds" % R(S_HRE))
        A("buffer_load_dwordx4 v121, %s, s%d offen offset:1024 lds" % (R(S_HRE), T2))
        A("s_branch %s" % Lb)
        A.label(La)
        A("buffer_load_dwordx4 v121, %s, 0 offen lds" % R(S_HIM))
        A("buffer_load_dwordx4 v121, %s, s%d offen offset:1024 lds" % (R(S_HIM), T2))
        A.label(Lb)
        return 6

    def cut(self): pass
    def b1_setup(self):
        A = self.A; L = T4; A1, C2, BA = self.A1, self.C2, self.BA
        t = 120
        A("v_lshrrev_b32 v%d, 1, v0\nv_and_b32 v%d, 1, v%d\ns_lshl_b32 s%d, s%d, 1\nv_add_u32 v%d, s%d, v%d" % (t, t, t, T0, L, t, T0, t))
        A("v_and_b32 v%d, 1, v0" % (t + 1))
        A("v_lshl_add_u32 v%d, v%d, 1, v%d\nv_cmp_eq_u32 vcc, 1, v%d" % (t + 2, t, t + 1, t + 2))
        A("v_cvt_f32_u32 v%d, v%d\nv_cvt_f32_u32 v%d, v%d\nv_mul_f32 v%d, %s, v%d\nv_mul_f32 v%d, 0x3e800000, v%d" % (t, t, t + 1, t + 1, t, f32(1 / 16), t, t + 1, t + 1))
        A("v_cndmask_b32 v%d, v%d, 0.5, vcc\nv_cndmask_b32 v%d, v%d, 0, vcc" % (t, t, t + 1, t + 1))
        for a_ in range(16):
            A("v_cos_f32 v%d, v%d" % (t + 4 + a_, t + 1))
            if a_ < 15: A("v_add_f32 v%d, v%d, v%d" % (t + 1, t + 1, t))
            self.cut()
        m = sum(0xf << (20 * g) for g in range(4))
        A("s_mov_b32 vcc_lo, 0x%x\ns_mov_b32 vcc_hi, 0x%x" % (m & 0xffffffff, m >> 32))
        for i in range(8):
            A(cvt(t + 4 + i, t + 4 + 2 * i, t + 5 + 2 * i))
            A("v_cndmask_b32 v%d, 0, v%d, vcc" % (A1 + i, t + 4 + i))
            self.cut()
        A("s_lshl_b32 s%d, s%d, 1" % (T0, L))
        A("v_and_b32 v%d, 15, v0\nv_lshlrev_b32 v%d, 4, v%d" % (t, t, t))
        A("v_add_u32 v%d, s%d, v%d\nv_add_u32 v%d, 1, v%d" % (t + 1, T0, t, t + 2, t + 1))
        A("v_add_u32 v%d, 8, v%d\nv_subrev_u32 v%d, 128, v%d" % (t + 3, t, t, t))
        A("s_mov_b32 vcc_lo, 0x00ff00ff\ns_mov_b32 vcc_hi, 0x00ff00ff")
        A("v_cndmask_b32 v%d, v%d, v%d, vcc" % (t + 3, t, t + 3))
        A("s_cmp_eq_u32 s%d, 0\ns_cselect_b64 vcc, -1, 0" % L)
        A("v_cndmask_b32 v%d, v%d, v%d, vcc" % (t + 1, t + 1, t + 3))
        A("v_lshrrev_b32 v%d, 2, v0\nv_and_b32 v%d, 12, v%d\nv_cvt_f32_u32 v%d, v%d" % (t, t, t, t, t))
        for k in range(2):
            A("v_cvt_f32_u32 v%d, v%d\nv_mul_f32 v%d, %s, v%d\nv_mul_f32 v%d, v%d, v%d" % (t + 3, t + 1 + k, t + 3, f32(1 / 256), t + 3, t + 20, t, t + 3))
            for b in range(4):
                A("v_cos_f32 v%d, v%d\nv_sin_f32 v%d, v%d" % (t + 4 + b, t + 20, t + 8 + b, t + 20))
                if b < 3: A("v_add_f32 v%d, v%d, v%d" % (t + 20, t + 20, t + 3))
                self.cut()
            c = C2 + 8 * k
            for i in range(2):
                A(cvt(c + i, t + 4 + 2 * i, t + 5 + 2 * i))
                A(cvt(c + 2 + i, t + 8 + 2 * i, t + 9 + 2 * i))
                A("v_xor_b32 v%d, 0x80008000, v%d" % (c + 4 + i, c + 2 + i))
                A("v_mov_b32 v%d, v%d" % (c + 6 + i, c + i))
                self.cut()
        Ls = A.newlabel("Lb1c")
        A("s_cmp_eq_u32 s3, 4\ns_cbranch_scc0 %s" % Ls)
        A("s_mov_b32 s%d, 0x01000100\ns_mov_b32 s%d, 0x01000100" % (T0, T1))
        A("s_mov_b32 vcc_lo, 0x00ff00ff\ns_mov_b32 vcc_hi, 0x00ff00ff")
        A("v_mov_b32 v%d, 0xbf803f80" % t)
        for i in range(2):
            A("v_cndmask_b32 v%d, v%d, v%d, s[%d:%d]" % (C2 + 4 + i, C2 + 4 + i, t, T0, T1))
            A("v_cndmask_b32 v%d, 0, v%d, vcc" % (C2 + 2 + i, C2 + i))
            A("v_cndmask_b32 v%d, 0, v%d, vcc" % (C2 + 6 + i, C2 + 4 + i))
            A("v_cndmask_b32 v%d, v%d, 0, vcc" % (C2 + i, C2 + i))
            A("v_cndmask_b32 v%d, v%d, 0, vcc" % (C2 + 4 + i, C2 + 4 + i))
        A.label(Ls)
        self.cut()
        A("v_and_b32 v%d, 60, v0\nv_lshlrev_b32 v%d, 4, v%d" % (t, t + 1, t))
        A("v_and_b32 v%d, 1, v0\nv_lshl_add_u32 v%d, v%d, 5, v%d" % (t + 2, t + 1, t + 2, t + 1))
        A("v_and_b32 v%d, 2, v0\nv_lshl_add_u32 v%d, v%d, 2, v%d" % (t + 2, t + 1, t + 2, t + 1))
        A("v_and_b32 v%d, 16, v0\nv_add_u32 v%d, v%d, v%d" % (t + 2, t + 1, t + 1, t + 2))
        A("v_add_u32 v%d, %d, v%d\nv_xor_b32 v%d, 16, v%d" % (BA, L_XB, t + 1, BA + 1, BA))
        self.cut()
        A("v_lshrrev_b32 v%d, 1, v0\nv_lshrrev_b32 v%d, 4, v0\nv_xor_b32 v%d, v%d, v%d\nv_and_b32 v%d, 3, v%d\nv_lshlrev_b32 v%d, 4, v%d" % (t + 1, t + 2, t + 1, t + 1, t + 2, t + 1, t + 1, t + 1, t + 1))
        A("v_and_b32 v%d, 15, v0\nv_lshl_add_u32 v%d, v%d, 6, v%d" % (t + 2, t + 1, t + 2, t + 1))
        A("s_lshl_b32 s%d, s%d, 12" % (T0, L))
        A("v_add_u32 v%d, s%d, v%d\nv_add_u32 v%d, s%d, v1" % (BA + 2, T0, t + 1, BA + 3, T0))
        self.cut()
        A("v_lshrrev_b32 v%d, 3, v0\nv_xor_b32 v%d, v%d, v0\nv_and_b32 v%d, 3, v%d\nv_lshlrev_b32 v%d, 4, v%d" % (t + 1, t + 1, t + 1, t + 1, t + 1, t + 1, t + 1))
        A("v_lshl_add_u32 v%d, v%d, 13, v%d" % (BA + 4, t, t + 1))
        A("s_lshl_b32 s%d, s%d, 20\ns_lshl_b32 s%d, s%d, 12\ns_add_u32 s%d, s%d, s%d\ns_lshl_b32 s%d, s%d, 6\ns_add_u32 s%d, s%d, s%d" % (T0, L, T1, S_XCD, T0, T0, T1, T1, S_CB, T0, T0, T1))
        A("s_add_u32 s%d, s%d, 0x%x\ns_add_u32 s%d, s%d, 0x%x" % (S_VB0, T0, WS_VB, S_VB0 + 1, S_VB0, 16 * 32768))

    def b1(self, mid):
        A = self.A; BA = self.BA
        A1, C2, DF, D1 = self.A1, self.C2, 56, 120
        PK, D2, OU, RB_ = 56, 72, 120, 136
        def rd(bp):
            return ["ds_read_b64_tr_b16 %s, v%d offset:%d" % (v(DF + 4 * ((bp * 2 + ah) * 2 + ct) + 2 * hf, 2), BA + ct, (bp * 4 + ah * 2 + hf) * 1024) for ah in range(2) for ct in range(2) for hf in range(2)]
        for l in rd(0) + rd(1): A(l)
        for bp in range(4):
            A("s_waitcnt lgkmcnt(%d)" % (8 if bp < 3 else 0))
            ms = [mf16(D1 + 4 * (ct * 4 + bp), A1 + 4 * ah, DF + 4 * ((bp * 2 + ah) * 2 + ct), (D1 + 4 * (ct * 4 + bp)) if ah else None) for ah in range(2) for ct in range(2)]
            for l in weave(ms, rd(bp + 2) if bp < 2 else [], per=2): A(l)
        if self.o.get("c3pos", 1) == 0: mid()
        for q in range(2):
            for ct in range(2):
                for k in range(2):
                    for ri in range(2):
                        A(cvt(PK + 4 * (ct * 2 + k) + 2 * ri + q, D1 + 4 * (ct * 4 + 2 * q) + 2 * k + ri, D1 + 4 * (ct * 4 + 2 * q + 1) + 2 * k + ri))
        for k in range(2):
            for ro in range(2):
                for ct in range(2):
                    A(mf16(D2 + 8 * (k * 2 + ro) + 4 * ct, PK + 4 * (ct * 2 + k), C2 + 8 * k + 4 * ro))
        if self.o.get("c3pos", 1) == 1: mid()
        for f in range(4):
            b = D2 + 8 * f; o = OU + 4 * f
            for i in range(4): A(cvt(o + i, b + 2 * i, b + 2 * i + 1))
            A("ds_write_b128 v%d, %s offset:%d" % (BA + 2, v(o, 4), f * 1024))
        for f in range(4): A("ds_read_b128 %s, v%d offset:%d" % (v(RB_ + 4 * f, 4), BA + 3, f * 1024))
        for f in range(4):
            A("s_waitcnt lgkmcnt(%d)" % (3 - f))
            A("buffer_store_dwordx4 %s, v%d, %s, s%d offen offset:%d sc1" % (v(RB_ + 4 * f, 4), BA + 4, R(S_WS), S_VB0 + (f >> 1), (f & 1) * 2048))

    def b1_flag(self):
        A = self.A
        A("s_sub_u32 s%d, s3, 4\ns_lshl_b32 s%d, s%d, 3\ns_add_u32 s%d, s%d, s%d\ns_lshl_b32 s%d, s%d, 5\ns_add_u32 s%d, s%d, s%d" % (T0, T0, T0, T0, T0, S_XCD, T0, T0, T0, T0, S_CB))
        A("s_lshl_b32 s%d, s%d, 7\ns_add_u32 s%d, s%d, 0x%x" % (T0, T0, T0, T0, WS_BF))
        self.flag(T0)

    HB, HC, TW, NH, TWF = 24, 40, 56, 80, 88
    def b2_row(self):
        A = self.A
        TT, GAM, MODE = S_TT, S_GAM, S_MODE
        A("s_lshl_b32 s%d, s%d, 4\ns_lshr_b32 s%d, s%d, 1\ns_add_u32 s%d, s%d, s%d" % (GAM, S_XCD, T1, S_IDX, GAM, GAM, T1))
        A("s_and_b32 s%d, s%d, 1" % (T2, S_IDX))
        A("s_and_b32 s%d, s%d, 15\ns_lshl_b32 s%d, s%d, 4" % (T0, GAM, T0, T0))
        A("s_add_u32 s%d, s%d, s%d" % (TT, T0, S_XCD))
        A("s_add_u32 s%d, s%d, 8\ns_sub_u32 s%d, s%d, 128\ns_cmp_lt_u32 s%d, 8\ns_cselect_b32 s%d, s%d, s%d" % (T1, T0, T0, T0, GAM, T0, T1, T0))
        A("s_cmp_eq_u32 s%d, 0\ns_cselect_b32 s%d, s%d, s%d" % (S_XCD, TT, T0, TT))
        A("s_lshl_b32 s%d, s%d, 2\ns_add_u32 s%d, s%d, s3" % (T0, T2, T0, T0))
        A("s_mov_b32 s%d, 0" % MODE)
        Lg = A.newlabel("Lb2g")
        A("s_cmp_eq_u32 s%d, 8\ns_cbranch_scc0 %s" % (GAM, Lg))
        A("s_mov_b32 s%d, s3\ns_sub_u32 s%d, 2, s%d\ns_cmp_eq_u32 s%d, 0\ns_cselect_b32 s%d, 128, 0" % (T0, MODE, T2, T2, TT))
        A.label(Lg)
        A("s_lshl_b32 s%d, s%d, 8\ns_add_u32 s%d, s%d, s%d" % (T0, T0, TT, TT, T0))

    def b2_am(self, AM, tmp):
        A = self.A
        A("v_cvt_f32_u32 v%d, s%d\nv_mul_f32 v%d, %s, v%d" % (tmp, S_TT, tmp, f32(1 / 2048), tmp))
        A("v_and_b32 v%d, 1, v0\nv_cvt_f32_u32 v%d, v%d\nv_mul_f32 v%d, 0x3e800000, v%d" % (tmp + 1, tmp + 1, tmp + 1, tmp + 1, tmp + 1))
        for u in range(8):
            A("v_cos_f32 v%d, v%d\nv_sin_f32 v%d, v%d" % (tmp + 2 + u, tmp + 1, tmp + 10 + u, tmp + 1))
            if u < 7: A("v_add_f32 v%d, v%d, v%d" % (tmp + 1, tmp + 1, tmp))
        m = sum(3 << (20 * g) for g in range(4))
        A("s_mov_b32 s%d, 0x%x\ns_mov_b32 s%d, 0x%x" % (T0, m & 0xffffffff, T1, m >> 32))
        A("s_cmp_eq_u32 s%d, 2\ns_cselect_b64 vcc, -1, 0" % S_MODE)
        for i in range(4):
            A(cvt(tmp + 2 + i, tmp + 2 + 2 * i, tmp + 3 + 2 * i))
            A(cvt(tmp + 10 + i, tmp + 10 + 2 * i, tmp + 11 + 2 * i))
            A("v_cndmask_b32 v%d, v%d, v%d, vcc" % (tmp + 10 + i, tmp + 10 + i, tmp + 2 + i))
        A("s_cselect_b64 vcc, 0, s[%d:%d]" % (T0, T1))
        for i in range(4): A("v_cndmask_b32 v%d, 0, v%d, vcc" % (AM + i, tmp + 2 + i))
        A("s_cmp_eq_u32 s%d, 1\ns_cselect_b64 vcc, 0, s[%d:%d]" % (S_MODE, T0, T1))
        for i in range(4): A("v_cndmask_b32 v%d, 0, v%d, vcc" % (AM + 4 + i, tmp + 10 + i))

    PA = 208
    def lo_setup(self):
        A = self.A; P = self.PA
        self.b2_row()
        self.b2_am(200, 120)
        A("v_and_b32 v120, 48, v0\nv_add_u32 v120, %d, v120" % L_CT)
        A("v_and_b32 v121, 12, v0\nv_and_b32 v122, 3, v0\nv_lshl_add_u32 v121, v121, 1, v122\nv_lshl_add_u32 v%d, v121, 6, v120" % P)
        A("v_and_b32 v121, 15, v0\nv_lshl_add_u32 v%d, v121, 6, v120" % (P + 1))
        A("v_and_b32 v120, 32, v0\nv_lshlrev_b32 v120, 2, v120\nv_xor_b32 v%d, v120, v1" % (P + 2))
        for r4 in range(4): A("v_xor_b32 v%d, %d, v%d" % (P + 4 + r4, 32 * r4, P + 2))
        A("s_lshl_b32 s%d, s3, 13\nv_add_u32 v%d, s%d, v1" % (T0, P + 8, T0))
        A("v_lshrrev_b32 v120, 2, v0\nv_and_b32 v120, 7, v120")
        A("v_lshlrev_b32 v122, 3, v122\nv_lshl_add_u32 v122, v120, 5, v122")
        A("v_and_b32 v120, 12, v0\nv_lshl_add_u32 v122, v120, 8, v122\nv_and_b32 v120, 16, v0\nv_lshl_add_u32 v122, v120, 5, v122\nv_and_b32 v120, 32, v0\nv_lshl_add_u32 v%d, v120, 8, v122" % (P + 3))
        A("v_and_b32 v252, 48, v0\nv_lshl_add_u32 v252, v252, 1, v121")
        A("s_lshr_b32 s%d, s%d, 1\ns_lshl_b32 s%d, s%d, 8\ns_and_b32 s%d, s3, 2\ns_lshl_b32 s%d, s%d, 6\ns_add_u32 s%d, s%d, s%d" % (T0, S_XCD, T0, T0, T1, T1, T1, T0, T0, T1))
        A("s_and_b32 s%d, s3, 1\ns_lshl_b32 s%d, s%d, 4\ns_add_u32 s%d, s%d, s%d" % (T1, T1, T1, T0, T0, T1))
        A("v_add_u32 v252, s%d, v252\nv_lshlrev_b32 v252, 7, v252\nv_add_u32 v252, 0x%x, v252" % (T0, WS_BF))
        A("s_lshl_b32 s%d, s%d, 15" % (T0, S_GAM))
        A("s_and_b32 s%d, s3, 2\ns_lshl_b32 s%d, s%d, 13\ns_add_u32 s%d, s%d, s%d" % (T1, T1, T1, T0, T0, T1))
        A("s_and_b32 s%d, s3, 1\ns_lshl_b32 s%d, s%d, 10\ns_add_u32 s%d, s%d, s%d\ns_add_u32 s%d, s%d, 0x%x" % (T1, T1, T1, T0, T0, T1, S_VB0, T0, WS_VB))
        A("s_lshl_b32 s%d, s3, 13" % (S_VB0 + 1))

    def b2_prep(self):
        A = self.A; HB, HC, TW, NH, TWF, P = self.HB, self.HC, self.TW, self.NH, self.TWF, self.PA
        for e in range(2):
            for ri in range(2):
                A("ds_read_b128 %s, v%d offset:%d" % (v(TW + 8 * e + 4 * ri, 4), P, 4096 + ri * 2048 + e * 256))
        for e in range(2):
            for ri in range(2):
                A("ds_read_b128 %s, v%d offset:%d" % (v(HB + 8 * e + 4 * ri, 4), P, ri * 2048 + e * 256))
                A("ds_read_b128 %s, v%d offset:%d" % (v(HC + 8 * e + 4 * ri, 4), P + 1, ri * 2048 + e * 1024))
        for i in range(8): A("v_mov_b32 v%d, v%d" % (72 + i, 200 + i))
        for o in range(8): A("v_xor_b32 v%d, %d, v%d" % (2 + o, 32 * o, P + 3))
        for r4 in range(4): A("v_xor_b32 v%d, %d, v%d" % (10 + r4, 32 * r4, P + 2))
        A("s_waitcnt lgkmcnt(0)")
    def b2_prep2(self):
        A = self.A; HB, TW, NH, TWF = self.HB, self.TW, self.NH, self.TWF
        for e in range(2):
            for ri in range(2):
                for i in range(4):
                    src = TW + 8 * e + 4 * ri + i; dst = TWF + 16 * e + 8 * ri + 2 * i
                    A("v_lshlrev_b32 v%d, 16, v%d" % (dst, src))
                    A("v_and_b32 v%d, 0xffff0000, v%d" % (dst + 1, src))
        for e in range(2):
            for i in range(4): A("v_xor_b32 v%d, 0x80008000, v%d" % (NH + 4 * e + i, HB + 8 * e + 4 + i))

    def v_dma(self):
        A = self.A
        for r4 in range(4):
            for ri in range(2):
                A("s_add_u32 m0, s%d, %d\ns_add_u32 s%d, s%d, %d" % (S_VB0 + 1, ri * 4096 + r4 * 1024, T0, S_VB0, r4 * 4096 + ri * 2048))
                A("buffer_load_dwordx4 v%d, %s, s%d offen sc1 lds" % (10 + r4, R(S_WS), T0))

    def b2(self):
        A = self.A; TT = S_TT
        HB, HC, AM, NH, TWF = self.HB, self.HC, 72, self.NH, self.TWF
        DF, DA, UF, DB = 120, 184, 56, 120
        def rd(vv):
            r = []
            for tau in range(2):
                for ri in range(2):
                    f = ((vv & 3) * 2 + tau) * 2 + ri
                    idx = 2 * vv + tau
                    for half in range(2):
                        r.append("ds_read_b64_tr_b16 %s, v%d offset:%d" % (v(DF + 4 * f + 2 * half, 2), 2 + (idx & 7), half * 16384 + ri * 4096 + (idx >> 3) * 256))
            return r
        A.label("L_b2row")
        for l in rd(0) + rd(1): A(l)
        def ucvt(i):
            return [cvt(UF + 4 * (tau * 2 + ri) + i, DA + 4 * ((2 * i) * 2 + tau) + ri, DA + 4 * ((2 * i + 1) * 2 + tau) + ri) for ri in range(2) for tau in range(2)]
        for vv in range(8):
            A("s_waitcnt lgkmcnt(%d)" % (8 if vv < 7 else 0))
            ms = []
            for ri in range(2):
                for tau in range(2):
                    f = ((vv & 3) * 2 + tau) * 2 + ri
                    d = DA + 4 * (vv * 2 + tau)
                    ms.append(mf16(d, AM + 4 * ri, DF + 4 * f, d if ri else None))
            fill = rd(vv + 2) if vv + 2 < 8 else []
            if vv in (3, 5, 7): fill = fill + ucvt((vv - 3) // 2)
            for l in weave(ms, fill, per=3): A(l)
        A("v_and_b32 v10, 15, v0\nv_lshrrev_b32 v11, 4, v0\nv_lshl_add_u32 v12, v10, 2, v11")
        A("v_add_u32 v12, 1, v12\nv_and_b32 v10, 3, v12\nv_and_b32 v12, 60, v12\nv_lshl_add_u32 v12, v10, 6, v12")
        for l in ucvt(3): A(l)
        def DBr(e, ro, tau): return DB + 4 * ((e * 2 + ro) * 2 + tau)
        for e in range(2):
            for rin in range(2):
                for ro in range(2):
                    for tau in range(2):
                        if rin == 0: c = HB + 8 * e + 4 * ro
                        else: c = (NH + 4 * e) if ro == 0 else (HB + 8 * e)
                        d = DBr(e, ro, tau)
                        A(mf16(d, UF + 4 * (tau * 2 + rin), c, d if rin else None))
        TP, TF, DC, OUTR = 184, 216, 232, 56
        for e in range(2):
            self.b2_hook(e)
            for u in range(8):
                tr = DBr(e, 0, u >> 2) + (u & 3); ti = DBr(e, 1, u >> 2) + (u & 3)
                wr = TWF + 16 * e + u; wi = wr + 8
                A("v_mul_f32 v%d, v%d, v%d" % (TP + 16 * e + u, tr, wr))
                A("v_mul_f32 v%d, v%d, v%d" % (TP + 16 * e + 8 + u, tr, wi))
                A("v_fma_f32 v%d, -v%d, v%d, v%d" % (TP + 16 * e + u, ti, wi, TP + 16 * e + u))
                A("v_fma_f32 v%d, -v%d, v%d, -v%d" % (TP + 16 * e + 8 + u, ti, wr, TP + 16 * e + 8 + u))
            for i in range(8): A(cvt(TF + 8 * e + i, TP + 16 * e + 2 * i, TP + 16 * e + 2 * i + 1))
            for ri in range(2):
                for eta in range(2):
                    d = DC + 8 * eta + 4 * e
                    A(mf16(d, TF + 8 * e + 4 * ri, HC + 8 * eta + 4 * ri, d if ri else None))
        A("v_and_b32 v10, 3, v0\nv_and_b32 v13, 60, v0\nv_lshl_add_u32 v13, v10, 6, v13")
        A("s_lshl_b32 s%d, s%d, 12\ns_add_u32 s%d, s%d, 2048\ns_sub_u32 s%d, 0x%x, s%d" % (T0, TT, T1, T0, T2, 2048 * 4096 + 4096 - 16 - 1024, T0))
        A("v_add_u32 v14, s%d, v1\nv_sub_u32 v15, s%d, v1" % (T1, T2))
        A("ds_bpermute_b32 v10, v12, v%d\nds_bpermute_b32 v11, v12, v%d" % (DC, DC + 8))
        for i in range(8):
            A(cvt(OUTR + i, DC + 2 * i, DC + 2 * i + 1))
            if i: A("ds_bpermute_b32 v%d, v13, v%d" % (OUTR + i - 1, OUTR + i - 1))
        A("s_mov_b32 vcc_lo, 0\ns_mov_b32 vcc_hi, 0x80000000")
        A("ds_bpermute_b32 v%d, v13, v%d" % (OUTR + 7, OUTR + 7))
        A("s_waitcnt lgkmcnt(8)")
        A("v_cndmask_b32 v248, v10, v11, vcc\nv_cndmask_b32 v249, v11, v10, vcc")
        for eta in range(2):
            b = DC + 8 * eta; o = OUTR + 8 + 4 * eta
            A(cvt(o, 248 + eta, b + 7))
            for i in range(1, 4): A(cvt(o + i, b + 8 - 2 * i, b + 7 - 2 * i))
        A("s_waitcnt lgkmcnt(0)")
        for i in range(8): A("ds_bpermute_b32 v%d, v13, v%d" % (OUTR + 8 + i, OUTR + 8 + i))
        Le = A.newlabel("Lb2e")
        if self.defer_b2:
            A("s_cmp_eq_u32 s%d, 0\ns_cbranch_scc0 %s" % (TT, Le))
        self.b2_stores(OUTR)
        if not self.defer_b2: A("s_cmp_eq_u32 s%d, 0\ns_cbranch_scc0 %s" % (TT, Le))
        A("s_mov_b32 s%d, 1024" % TT)
        self.b2_am(72, 184)
        A("s_branch L_b2row")
        A.label(Le)
    defer_b2 = False
    def b2_hook(self, e): pass
    def b2_stores(self, OUTR, wait=True):
        A = self.A; fl = self.o["stb"]
        for eta in range(2):
            A("buffer_store_dwordx4 %s, v14, %s, 0 offen offset:%d%s" % (v(OUTR + 4 * eta, 4), R(S_OUT), eta * 1024, fl))
        for eta in range(2):
            if wait: A("s_waitcnt lgkmcnt(%d)" % (4 - 4 * eta))
            A("buffer_store_dwordx4 %s, v15, %s, 0 offen offset:%d%s" % (v(OUTR + 8 + 4 * eta, 4), R(S_OUT), (1 - eta) * 1024, fl))

    G_ACC, G_WF, G_OF, G_AD = 120, 152, 200, 16
    def g2_range(self, lo):
        nl = self.o["nl"]
        return (0, nl) if lo else (nl, 32 - nl)
    def g2_setup(self, lo):
        A = self.A; TT = T3; AD = self.G_AD
        k0, NK = self.g2_range(lo)
        A("s_lshl_b32 s%d, s%d, 2\ns_and_b32 s%d, s3, 3\ns_add_u32 s%d, s%d, s%d" % (TT, S_RB2, T0, TT, TT, T0))
        A("v_lshrrev_b32 v%d, 2, v0\nv_and_b32 v%d, 7, v%d" % (AD + 1, AD + 1, AD + 1))
        A("v_lshrrev_b32 v%d, 1, v%d\nv_lshlrev_b32 v%d, 5, v%d\nv_lshl_add_u32 v%d, v%d, 7, v%d" % (AD + 2, AD + 1, AD + 2, AD + 2, AD, AD + 1, AD + 2))
        A("v_and_b32 v%d, 32, v0\nv_lshl_add_u32 v%d, v%d, 6, v%d\nv_and_b32 v%d, 3, v0\nv_lshl_add_u32 v%d, v%d, 3, v%d" % (AD + 1, AD, AD + 1, AD, AD + 1, AD, AD + 1, AD))
        A("v_add_u32 v%d, %d, v%d" % (AD, L_WO + k0 * 4096, AD))
        for nu in range(1, 4): A("v_xor_b32 v%d, %d, v%d" % (AD + nu, 32 * nu, AD))
        A("s_lshl_b32 s%d, s%d, 16\ns_add_u32 s%d, s%d, 0x%x" % (T0, TT, T0, T0, WS_O + k0 * 1024))
        A("v_add_u32 v%d, s%d, v1\nv_add_u32 v%d, 0x8000, v%d" % (AD + 4, T0, AD + 5, AD + 4))

    def g2_rd(self, k):
        WF, AD = self.G_WF, self.G_AD
        r = ["v_add_u32 v%d, 0x10000, v%d" % (AD + nu, AD + nu) for nu in range(4)] if k == 16 else []
        return r + ["ds_read_b64_tr_b16 %s, v%d offset:%d" % (v(WF + 16 * (k % 3) + 4 * nu + 2 * half, 2), AD + nu, (k & 15) * 4096 + half * 1024) for nu in range(4) for half in range(2)]
    def g2_main(self, lo):
        A = self.A
        ACC, WF, OF, AD = self.G_ACC, self.G_WF, self.G_OF, self.G_AD
        k0, NK = self.g2_range(lo)
        D = 5
        vm = VM()
        def ld(k):
            r = []
            if k % 4 == 0: r.append("s_mov_b32 s%d, %d" % (T1, k * 1024))
            for rt in range(2):
                r.append(("vm", k, "buffer_load_dwordx4 %s, v%d, %s, s%d offen offset:%d sc1" % (v(OF + 8 * (k % 6) + 4 * rt, 4), AD + 4 + rt, R(S_WS), T1, (k & 3) * 1024)))
            return r
        def emit(l):
            if isinstance(l, tuple): vm.add(l[1]); A(l[2])
            else: A(l)
        for k in range(D):
            for l in ld(k): emit(l)
        kb = self.o.get("kb", NK - 4); c5 = self.o["c5"]
        late = []
        if not lo and self.o.get("latehi", 1): assert 1 <= c5 <= 26 - k0 - 2
        for k in range(NK):
            if lo and k == kb:
                A("buffer_load_dword v253, v252, %s, 0 offen sc1" % R(S_WS)); vm.add("bf")
            if lo and k == kb + 2:
                Lok = A.newlabel("Lbf")
                A("s_waitcnt vmcnt(%d)" % vm.cnt("bf"))
                A("v_cmp_ne_u32 vcc, s%d, v253" % S_N)
                A("s_nop 1")
                A("s_cbranch_vccz %s" % Lok)
                self.poll(252, 64, 253, sleep=self.o.get("bfs", 8))
                A.label(Lok)
                self.st("bfok")
                self.v_dma(); vm.add("v", 8)
            if not lo and k in (c5, c5 + 1):
                A("s_barrier")
                if k == c5: self.st("C5")
            A("s_waitcnt vmcnt(%d) lgkmcnt(%d)" % (vm.cnt(k), 8 if k + 1 < NK else 0))
            ms = [mf16(ACC + 16 * rt + 4 * nu, WF + 16 * (k % 3) + 4 * nu, OF + 8 * (k % 6) + 4 * rt, (ACC + 16 * rt + 4 * nu) if k else None) for rt in range(2) for nu in range(4)]
            fill = (self.g2_rd(k + 2) if k + 2 < NK else []) + (ld(k + D) if k + D < NK else [])
            if lo and k < len(late):
                assert k < kb + 2
                fill += [("vm", "w", l) if l.startswith("buffer") else l for l in late[k]]
            for l in weave(ms, fill, per=2): emit(l)
        self.st("g2end")

    def g2_handover(self):
        A = self.A; ACC = self.G_ACC
        A("s_lshl_b32 s%d, s3, 13\ns_add_u32 s%d, s%d, %d\nv_add_u32 v248, s%d, v1" % (T0, T0, T0, L_WO, T0))
        A("s_waitcnt vmcnt(0)")
        A("s_barrier")
        self.st("C5")
        for i in range(8): A("ds_write_b128 v248, %s offset:%d" % (v(ACC + 4 * i, 4), i * 1024))
        A("s_waitcnt lgkmcnt(0)")
        A("s_barrier")

    def g2_end_setup(self):
        A = self.A; TT = T3
        A("s_and_b32 s%d, s3, 3\ns_lshl_b32 s%d, s%d, 13\ns_add_u32 s%d, s%d, %d\nv_add_u32 v3, s%d, v1" % (T0, T0, T0, T0, T0, self.RED, T0))
        A("v_and_b32 v4, 15, v0\nv_lshrrev_b32 v5, 3, v0\nv_and_b32 v5, 2, v5\nv_lshrrev_b32 v6, 5, v0\nv_or_b32 v5, v5, v6")
        A("v_and_b32 v6, 7, v0\nv_xor_b32 v5, v5, v6\nv_lshlrev_b32 v5, 4, v5\nv_lshl_add_u32 v4, v4, 7, v5")
        A("v_add_u32 v4, s%d, v4\nv_xor_b32 v5, 64, v4" % T0)
        A("v_lshrrev_b32 v7, 3, v0\nv_xor_b32 v6, v6, v7\nv_lshlrev_b32 v6, 4, v6\nv_lshl_add_u32 v6, v7, 12, v6")
        A("s_lshl_b32 s%d, s%d, 17\ns_lshl_b32 s%d, s%d, 7\ns_add_u32 s%d, s%d, s%d" % (S_E0, TT, T1, S_SL, S_E0, S_E0, T1))
    def g2_end(self):
        A = self.A; ACC, PR, PKR = self.G_ACC, 56, 88
        for i in range(8): A("ds_read_b128 %s, v3 offset:%d" % (v(PR + 4 * i, 4), i * 1024))
        for q in range(4):
            A("s_waitcnt lgkmcnt(%d)" % (6 - 2 * q))
            for i in range(8 * q, 8 * q + 8): A("v_add_f32 v%d, v%d, v%d" % (ACC + i, ACC + i, PR + i))
            for i in range(4 * q, 4 * q + 4): A(cvt(PKR + i, ACC + 2 * i, ACC + 2 * i + 1))
        for q in range(4):
            A("v_permlane16_swap_b32 v%d, v%d" % (PKR + 4 * q, PKR + 4 * q + 2))
            A("v_permlane16_swap_b32 v%d, v%d" % (PKR + 4 * q + 1, PKR + 4 * q + 3))
            A("ds_write_b128 v%d, %s offset:%d" % (4 + (q & 1), v(PKR + 4 * q, 4), (q >> 1) * 2048))
        for q in range(4): A("ds_read_b128 %s, v3 offset:%d" % (v(PR + 4 * q, 4), q * 1024))
        for q in range(4):
            A("s_waitcnt lgkmcnt(%d)" % (3 - q))
            A("buffer_store_dwordx4 %s, v6, %s, s%d offen%s" % (v(PR + 4 * q, 4), R(S_OUT), S_E0, self.o["sta"]))
            if q < 3: A("s_add_u32 s%d, s%d, 32768" % (S_E0, S_E0))

    def build(self):
        A = self.A; o = self.o
        self.entry()
        A("s_cmp_lt_u32 s3, 4\ns_cbranch_scc1 L_compute")
        self.loader()
        if (o["kfast"] and not o.get("bsfirst", 1)) or o.get("kflag"): self.b1_setup()
        self.kv_publish()
        self.own_kv_reads(2)
        if o["kfast"]:
            A("s_waitcnt lgkmcnt(0)")
            A("s_barrier")
            self.st("C1")
            A("s_waitcnt vmcnt(0)")
            self.two_ways(lambda fl: self.flag(T2, fl=fl))
            self.st("C2")
            self.q_read()
            self.halo_fetch()
            self.chunk0(False)
            self.st("c0end")
            self.halo_prep()
            if o.get("bsfirst", 1): self.b1_setup()
        else:
            A("s_waitcnt lgkmcnt(0)")
            A("s_barrier")
            self.st("C1")
            A("s_setprio 1")
            self.q_read()
            self.chunk0(False)
            self.st("c0end")
            A("s_waitcnt vmcnt(0)")
            if o.get("kflag"):
                self.two_ways(lambda fl: self.flag(T2, fl=fl))
                self.st("C2")
            else:
                self.flag(T2)
                self.st("C2")
                self.b1_setup()
            self.halo_fetch()
            A("s_setprio 0")
            self.halo_prep()
        self.st("preHB")
        A("s_waitcnt vmcnt(0)")
        A("s_barrier")
        self.xb_fetch()
        A("s_branch L_att")
        A.label("L_compute")
        self.setup()
        self.gemm1_compute()
        A("s_barrier")
        self.st("C1")
        self.nonce_load()
        self.q_read()
        self.nonce_fin()
        self.chunk0(True)
        self.st("c0end")
        self.halo_prep()
        self.lo_setup()
        self.st("preHB")
        A("s_barrier")
        A.label("L_att")
        self.st("HB")
        if o["ofast"]: self.o_touch()
        g = self.wo_groups(0, 13, 3)
        for l in g[0]: A(l)
        Lno = A.newlabel("Lno"); Lfin = A.newlabel("Lfin")
        A("s_cmp_eq_u32 s%d, 0\ns_cbranch_scc1 %s" % (S_RB, Lno))
        self.halo(g[1:])
        A("s_branch %s" % Lfin)
        A.label(Lno)
        A("s_barrier")
        for gg in g[1:]:
            for l in gg: A(l)
        A.label(Lfin)
        if o["ofast"]:
            A("s_waitcnt vmcnt(14)")
            self.o_check()
        self.o_store()
        self.st("ost")
        A("s_cmp_lt_u32 s3, 4\ns_cbranch_scc1 L_lo2")
        A("s_waitcnt vmcnt(2) lgkmcnt(0)")
        A("s_barrier")
        self.st("X")
        def mid():
            A("s_waitcnt vmcnt(0)")
            A("s_barrier")
            self.st("C3")
        self.b1(mid)
        if o.get("latehi", 1):
            for gg in self.wo_groups(104, 6, T4):
                for l in gg: A(l)
        self.g2_setup(False)
        self.g2_end_setup()
        for l in self.g2_rd(0) + self.g2_rd(1): A(l)
        A("s_waitcnt vmcnt(%d)" % (6 if o.get("latehi", 1) else 0))
        self.b1_flag()
        self.st("b1f")
        A("s_barrier")
        self.st("opoll")
        self.g2_main(False)
        self.g2_end()
        A("s_branch L_fin")
        A.label("L_lo2")
        self.g2_setup(True)
        A("s_lshl_b32 s%d, s%d, 4\ns_add_u32 s%d, s%d, s%d\ns_lshl_b32 s%d, s%d, 7\ns_add_u32 s%d, s%d, 0x%x" % (T2, S_RB, T2, T2, S_G, T2, T2, T2, T2, WS_OF))
        A("s_lshl_b32 s%d, s%d, 11\ns_add_u32 s%d, s%d, 0x%x\nv_lshl_add_u32 v22, v0, 7, s%d" % (T0, S_RB2, T0, T0, WS_OF, T0))
        A("s_waitcnt vmcnt(0) lgkmcnt(0)")
        A("s_barrier")
        self.st("X")
        self.b2_prep()
        A("s_barrier")
        self.st("C3")
        Ls = A.newlabel("Ls")
        A("s_cmp_eq_u32 s3, 0\ns_cbranch_scc0 %s" % Ls)
        if o["ofast"]: self.two_ways(lambda fl: self.flag(T2, fl=fl))
        else: self.flag(T2)
        A.label(Ls)
        if not o.get("latehi", 1):
            for gg in self.wo_groups(104, 6, 3):
                for l in gg: A(l)
        self.b2_prep2()
        for l in self.g2_rd(0) + self.g2_rd(1): A(l)
        Ls = A.newlabel("Ls")
        A("s_cmp_eq_u32 s3, 1\ns_cbranch_scc0 %s" % Ls)
        self.poll(22, 16, 253, sleep=o.get("os", 1))
        A.label(Ls)
        A("s_waitcnt vmcnt(0)")
        A("s_barrier")
        self.st("opoll")
        self.g2_main(True)
        self.g2_handover()
        if o.get("b2p", 1): A("s_setprio 1")
        self.b2()
        self.epoch()
        A.label("L_fin")
        if self.diag: A("s_waitcnt vmcnt(0)")
        self.st("end")
        self.stamp_store()
        A.label("L_end")
        A("s_endpgm")
        lines = hazard.fix(A.lines, verbose=o.get("verbose"))
        return module([dict(name=NAME + "_kernel", body="\n".join(lines) + "\n", grid=256, block=512, lds=LDS_BYTES, vgpr=256, accum=256)], single=True)

DEF = dict(map=1, rotf=(0, 4, 5), g2map=2, ofast=0, nl=12, c5=10, sta=" sc1", stb=" sc1", sp0=3, spn=2, spi=8, kfast=0, slot4=0)
if __name__ == "__main__":
    import ast
    if len(sys.argv) > 1:
        for spec in sys.argv[1:]:
            name, kw = spec.split("=", 1)
            kw = dict(DEF, **ast.literal_eval(kw))
            g = Gen(diag=kw.pop("diag", True), cyc=kw.pop("cyc", False), opts=kw)
            open("work/%s.s" % name, "w").write(g.build())
    else:
        open("cdna_kernels/%s.s" % NAME, "w").write(Gen(opts=dict(DEF, verbose=True)).build())
```

```python
from k6 import *
import k6

class Gen7(Gen):
    PX, PC = 224, 225
    defer_b2 = True
    def xb_addr(self):
        A = self.A; L = T4
        A("v_and_b32 v20, 12, v0\nv_lshlrev_b32 v20, 16, v20")
        A("v_lshrrev_b32 v21, 4, v0\nv_lshl_add_u32 v20, v21, 16, v20")
        A("v_and_b32 v21, 1, v21\nv_and_b32 v22, 3, v0\nv_xor_b32 v21, v21, v22\nv_lshl_add_u32 v20, v21, 4, v20")
        A("s_lshl_b32 s%d, s%d, 14\ns_lshl_b32 s%d, s%d, 11\ns_add_u32 s%d, s%d, s%d\ns_lshl_b32 s%d, s%d, 6\ns_add_u32 s%d, s%d, s%d" % (T0, L, T1, S_XCD, T0, T0, T1, T1, S_CB, T0, T0, T1))
        A("v_add_u32 v%d, s%d, v20" % (self.PX, T0))
        A("v_lshrrev_b32 v21, 2, v0\nv_and_b32 v22, 48, v1")
        A("s_cmp_lt_u32 s%d, 2\ns_cselect_b32 s%d, 16, 11" % (L, T1))
        A("v_lshlrev_b32 v21, s%d, v21\nv_add_u32 v%d, v21, v22" % (T1, self.PC))
    def xb_fetch(self):
        A = self.A; L = T4
        A("s_lshl_b32 s%d, s%d, 12\ns_add_u32 m0, s%d, %d\ns_mov_b32 s%d, 0" % (T1, L, T1, L_XB, T0))
        for i in range(4):
            A("buffer_load_dwordx4 v%d, %s, s%d offen offset:%d lds" % (self.PX, R(S_BX), T0, 1024 * i))
            if i < 3: A("s_add_u32 s%d, s%d, 0x%x" % (T0, T0, (1 << 20) - 1024))
        A("s_cmp_lt_u32 s%d, 2\ns_cselect_b32 s%d, 16, 11" % (L, T1))
        A("s_lshl_b32 s%d, 16, s%d\ns_sub_u32 s%d, s%d, 1024" % (T2, T1, T2, T2))
        A("s_lshl_b32 s%d, s%d, 11\ns_add_u32 m0, s%d, %d" % (T1, L, T1, L_CT))
        La = A.newlabel("Lct"); Lb = A.newlabel("Lct")
        A("s_bitcmp1_b32 s3, 0\ns_cbranch_scc1 %s" % La)
        A("buffer_load_dwordx4 v%d, %s, 0 offen lds" % (self.PC, R(S_HRE)))
        A("buffer_load_dwordx4 v%d, %s, s%d offen offset:1024 lds" % (self.PC, R(S_HRE), T2))
        A("s_branch %s" % Lb)
        A.label(La)
        A("buffer_load_dwordx4 v%d, %s, 0 offen lds" % (self.PC, R(S_HIM)))
        A("buffer_load_dwordx4 v%d, %s, s%d offen offset:1024 lds" % (self.PC, R(S_HIM), T2))
        A.label(Lb)
        return 6
    def loader_setup_hook(self): self.xb_addr()
    def loader_tail_hook(self): return self.xb_fetch() if not self.o.get("xbi") else 0
    def loader_loop_hook(self, issue):
        if not self.o.get("xbi"): return
        A = self.A; L = A.newlabel("Lxb")
        A("s_cmp_eq_u32 s%d, %d\ns_cbranch_scc0 %s" % (T3, self.o["xbi"], L))
        if self.o.get("pair"): A("s_bitcmp1_b32 s%d, 0\ns_cbranch_scc1 %s" % (S_G, L))
        self.xb_fetch()
        for i in range(2):
            self.spf()
            A("s_waitcnt vmcnt(16)")
            A("s_barrier")
            issue()
        A("s_add_u32 s%d, s%d, 2" % (T3, T3))
        A.label(L)

    def b1(self):
        A = self.A; BA = self.BA
        A1, C2, DF, D1 = self.A1, self.C2, 56, 120
        PK, D2, OU, RB_ = 56, 72, 120, 200
        def rd(bp):
            return ["ds_read_b64_tr_b16 %s, v%d offset:%d" % (v(DF + 4 * ((bp * 2 + ah) * 2 + ct) + 2 * hf, 2), BA + ct, (bp * 4 + ah * 2 + hf) * 1024) for ah in range(2) for ct in range(2) for hf in range(2)]
        for l in rd(0) + rd(1): A(l)
        for bp in range(4):
            A("s_waitcnt lgkmcnt(%d)" % (8 if bp < 3 else 0))
            ms = [mf16(D1 + 4 * (ct * 4 + bp), A1 + 4 * ah, DF + 4 * ((bp * 2 + ah) * 2 + ct), (D1 + 4 * (ct * 4 + bp)) if ah else None) for ah in range(2) for ct in range(2)]
            for l in weave(ms, rd(bp + 2) if bp < 2 else [], per=2): A(l)
        for q in range(2):
            for ct in range(2):
                for k in range(2):
                    for ri in range(2):
                        A(cvt(PK + 4 * (ct * 2 + k) + 2 * ri + q, D1 + 4 * (ct * 4 + 2 * q) + 2 * k + ri, D1 + 4 * (ct * 4 + 2 * q + 1) + 2 * k + ri))
        for k in range(2):
            for ro in range(2):
                for ct in range(2):
                    A(mf16(D2 + 8 * (k * 2 + ro) + 4 * ct, PK + 4 * (ct * 2 + k), C2 + 8 * k + 4 * ro))
        for f in range(4):
            b = D2 + 8 * f; o = OU + 4 * f
            for i in range(4): A(cvt(o + i, b + 2 * i, b + 2 * i + 1))
            A("ds_write_b128 v%d, %s offset:%d" % (BA + 2, v(o, 4), f * 1024))
        for f in range(4): A("ds_read_b128 %s, v%d offset:%d" % (v(RB_ + 4 * f, 4), BA + 3, f * 1024))
    def b1_store(self):
        A = self.A
        for f in range(4):
            A("buffer_store_dwordx4 %s, v%d, %s, s%d offen offset:%d sc1" % (v(200 + 4 * f, 4), self.BA + 4, R(S_WS), S_VB0 + (f >> 1), (f & 1) * 2048))

    def g2_range(self, lo):
        nl = self.o["nl"]
        return (32 - nl, nl) if lo else (0, 32 - nl)
    def g2_poll(self, lo):
        A = self.A
        k0, NK = self.g2_range(lo)
        A("s_lshl_b32 s%d, s%d, 11\ns_add_u32 s%d, s%d, 0x%x\nv_lshl_add_u32 v22, v0, 7, s%d" % (T0, S_RB2, T0, T0, WS_OF + (k0 // 2) * 128, T0))
        self.poll(22, NK // 2, 253, sleep=self.o.get("os", 2))
        self.st("opoll")
    def g2_ld(self, k):
        OF, AD = self.G_OF, self.G_AD
        r = []
        if k % 4 == 0: r.append("s_mov_b32 s%d, %d" % (T1, k * 1024))
        for rt in range(2):
            r.append(("vm", k, "buffer_load_dwordx4 %s, v%d, %s, s%d offen offset:%d sc1" % (v(OF + 8 * (k % 6) + 4 * rt, 4), AD + 4 + rt, R(S_WS), T1, (k & 3) * 1024)))
        return r
    def g2_main(self, lo):
        A = self.A
        ACC, WF, OF, AD = self.G_ACC, self.G_WF, self.G_OF, self.G_AD
        k0, NK = self.g2_range(lo)
        D = self.o.get('D', 5)
        vm = VM()
        ld = self.g2_ld
        def emit(l):
            if isinstance(l, tuple): vm.add(l[1]); A(l[2])
            else: A(l)
        for k in range(D):
            for l in ld(k): emit(l)
        c5 = self.o["c5l"] if lo else self.o["c5"]
        if lo: assert c5 <= NK - 4
        for k in range(NK):
            if k == c5:
                A("s_barrier")
                self.st("C5")
            A("s_waitcnt vmcnt(%d) lgkmcnt(%d)" % (vm.cnt(k), 8 if k + 1 < NK else 0))
            ms = [mf16(ACC + 16 * rt + 4 * nu, WF + 16 * (k % 3) + 4 * nu, OF + 8 * (k % 6) + 4 * rt, (ACC + 16 * rt + 4 * nu) if k else None) for rt in range(2) for nu in range(4)]
            fill = (self.g2_rd(k + 2) if k + 2 < NK else []) + (ld(k + D) if k + D < NK else [])
            for l in weave(ms, fill, per=2): emit(l)
        self.st("g2end")

    def build(self):
        A = self.A; o = self.o
        self.entry()
        A("s_cmp_lt_u32 s3, 4\ns_cbranch_scc1 L_compute")
        self.loader()
        self.kv_publish()
        self.own_kv_reads(2)
        A("s_waitcnt lgkmcnt(0)")
        A("s_barrier")
        self.st("C1")
        A("s_setprio 1")
        self.q_read()
        self.chunk0(False)
        self.st("c0end")
        A("s_waitcnt vmcnt(0)")
        self.flag(T2)
        self.st("C2")
        self.b1_setup()
        A("v_add_u32 v%d, %d, v%d\nv_add_u32 v%d, %d, v%d" % (self.BA + 2, 65536, self.BA + 2, self.BA + 3, 65536, self.BA + 3))
        self.halo_fetch()
        A("s_barrier")
        self.b1()
        if not o.get("prio", 1): A("s_setprio 0")
        self.halo_prep()
        self.st("preHB")
        if o.get("vbpre", 1):
            A("s_waitcnt lgkmcnt(0)")
            self.b1_store()
            A("s_waitcnt vmcnt(4)")
            A("s_barrier")
        else:
            A("s_waitcnt vmcnt(0) lgkmcnt(0)")
            A("s_barrier")
            self.b1_store()
        A("s_branch L_att")
        A.label("L_compute")
        self.setup()
        self.gemm1_compute()
        A("s_barrier")
        self.st("C1")
        self.nonce_load()
        self.q_read()
        self.nonce_fin()
        self.chunk0(True)
        self.st("c0end")
        A("s_barrier")
        self.halo_prep()
        self.lo_setup()
        self.st("preHB")
        A("s_barrier")
        if o.get("prio", 1): A("s_setprio 2")
        A.label("L_att")
        self.st("HB")
        g = self.wo_groups(0, 15, 3)
        for l in g[0]: A(l)
        def hook():
            Ls = A.newlabel("Ls")
            A("s_cmp_lt_u32 s3, 4\ns_cbranch_scc1 %s" % Ls)
            A("s_waitcnt vmcnt(0)")
            self.b1_flag()
            A.label(Ls)
        self.mid_hook = hook
        Lno = A.newlabel("Lno"); Lfin = A.newlabel("Lfin")
        A("s_cmp_eq_u32 s%d, 0\ns_cbranch_scc1 %s" % (S_RB, Lno))
        self.halo(g[1:])
        A("s_branch %s" % Lfin)
        A.label(Lno)
        hook()
        A("s_barrier")
        for gg in g[1:]:
            for l in gg: A(l)
        A.label(Lfin)
        self.o_store()
        A("s_setprio 0")
        self.st("ost")
        A("s_cmp_lt_u32 s3, 4\ns_cbranch_scc1 L_lo2")
        A("s_waitcnt lgkmcnt(0)")
        A("s_barrier")
        self.st("X")
        for gg in self.wo_groups(120, 2, T4):
            for l in gg: A(l)
        self.g2_setup(False)
        A("s_lshl_b32 s%d, s%d, 4\ns_add_u32 s%d, s%d, s%d\ns_lshl_b32 s%d, s%d, 7\ns_add_u32 s%d, s%d, 0x%x" % (T2, S_RB, T2, T2, S_G, T2, T2, T2, T2, WS_OF))
        A("s_waitcnt vmcnt(2)")
        A("s_barrier")
        self.st("C3")
        Ls = A.newlabel("Ls")
        A("s_cmp_eq_u32 s3, 4\ns_cbranch_scc0 %s" % Ls)
        self.flag(T2)
        A.label(Ls)
        self.RED = 0
        self.g2_end_setup()
        for l in self.g2_rd(0) + self.g2_rd(1): A(l)
        self.g2_poll(False)
        self.g2_main(False)
        A("s_barrier")
        self.g2_end()
        A("s_branch L_fin")
        A.label("L_lo2")
        A("buffer_load_dword v253, v252, %s, 0 offen sc1" % R(S_WS))
        self.b2_prep()
        self.poll(252, 64, 253, issued=True, sleep=o.get("bfs", 8))
        self.st("bfok")
        VS = 120
        for r4 in range(4):
            A("s_add_u32 s%d, s%d, %d" % (T0, S_VB0, r4 * 4096))
            for ri in range(2):
                A("buffer_load_dwordx4 %s, v%d, %s, s%d offen offset:%d sc1" % (v(VS + 4 * (2 * r4 + ri), 4), 10 + r4, R(S_WS), T0, ri * 2048))
        A("v_add_u32 v248, s%d, v1" % (S_VB0 + 1))
        self.b2_prep2()
        self.g2_setup(True)
        A("s_barrier")
        self.st("X")
        for r4 in range(4):
            for ri in range(2):
                A("s_waitcnt vmcnt(%d)" % (7 - 2 * r4 - ri))
                A("ds_write_b128 v248, %s offset:%d" % (v(VS + 4 * (2 * r4 + ri), 4), ri * 4096 + r4 * 1024))
        A("s_waitcnt lgkmcnt(0)")
        A("s_barrier")
        self.st("C3")
        self.b2()
        self.st("b2end")
        A("s_waitcnt lgkmcnt(0)")
        for l in self.g2_rd(0) + self.g2_rd(1): A(l)
        self.g2_poll(True)
        self.g2_main(True)
        A("s_lshl_b32 s%d, s3, 13\nv_add_u32 v248, s%d, v1" % (T0, T0))
        for i in range(8): A("ds_write_b128 v248, %s offset:%d" % (v(self.G_ACC + 4 * i, 4), i * 1024))
        self.b2_stores(56, wait=False)
        self.epoch()
        A("s_waitcnt lgkmcnt(0)")
        A("s_barrier")
        A.label("L_fin")
        if self.diag: A("s_waitcnt vmcnt(0)")
        self.st("end")
        self.stamp_store()
        A.label("L_end")
        A("s_endpgm")
        lines = hazard.fix(A.lines, verbose=o.get("verbose"))
        return module([dict(name=NAME + "_kernel", body="\n".join(lines) + "\n", grid=256, block=512, lds=LDS_BYTES, vgpr=256, accum=256)], single=True)

DEF7 = dict(DEF, nl=14, c5=10, c5l=8)
if __name__ == "__main__":
    import ast
    if len(sys.argv) > 1:
        for spec in sys.argv[1:]:
            name, kw = spec.split("=", 1)
            kw = dict(DEF7, **ast.literal_eval(kw))
            g = Gen7(diag=kw.pop("diag", True), cyc=kw.pop("cyc", False), opts=kw)
            open("work/%s.s" % name, "w").write(g.build())
    else:
        open("cdna_kernels/%s.s" % NAME, "w").write(Gen7(opts=dict(DEF7, verbose=True)).build())
```

```python
from k7 import *

class Gen9(Gen7):
    def b1(self):
        A = self.A; BA = self.BA
        A1, C2 = self.A1, self.C2
        DF, D1 = 88, 152
        PK, D2, OU = 88, 104, 136
        def rd(bp):
            return ["ds_read_b64_tr_b16 %s, v%d offset:%d" % (v(DF + 16 * bp + 4 * (ah * 2 + ct) + 2 * hf, 2), BA + ct, (bp * 4 + ah * 2 + hf) * 1024) for ah in range(2) for ct in range(2) for hf in range(2)]
        for l in rd(0) + rd(1): A(l)
        for bp in range(4):
            A("s_waitcnt lgkmcnt(%d)" % (8 if bp < 3 else 0))
            ms = [mf16(D1 + 4 * (ct * 4 + bp), A1 + 4 * ah, DF + 16 * bp + 4 * (ah * 2 + ct), (D1 + 4 * (ct * 4 + bp)) if ah else None) for ah in range(2) for ct in range(2)]
            for l in weave(ms, rd(bp + 2) if bp < 2 else [], per=2): A(l)
        for q in range(2):
            for ct in range(2):
                for k in range(2):
                    for ri in range(2):
                        A(cvt(PK + 4 * (ct * 2 + k) + 2 * ri + q, D1 + 4 * (ct * 4 + 2 * q) + 2 * k + ri, D1 + 4 * (ct * 4 + 2 * q + 1) + 2 * k + ri))
        for k in range(2):
            for ro in range(2):
                for ct in range(2):
                    A(mf16(D2 + 8 * (k * 2 + ro) + 4 * ct, PK + 4 * (ct * 2 + k), C2 + 8 * k + 4 * ro))
        for f in range(4):
            b = D2 + 8 * f; o = OU + 4 * f
            for i in range(4): A(cvt(o + i, b + 2 * i, b + 2 * i + 1))
            A("ds_write_b128 v%d, %s offset:%d" % (BA + 2, v(o, 4), f * 1024))
        for f in range(4): A("ds_read_b128 %s, v%d offset:%d" % (v(200 + 4 * f, 4), BA + 3, f * 1024))

    def wo_touch(self):
        A = self.A; lr = self.o["g2map"]; nl = 256 >> lr
        A("s_and_b32 s%d, s%d, %d\ns_lshl_b32 s%d, s%d, 2\ns_add_u32 s%d, s%d, s%d\ns_mul_i32 s%d, s%d, %d" % (T0, S_IDX, (1 << lr) - 1, T0, T0, T0, T0, T4, T0, T0, nl * 2048))
        A("s_lshl_b32 s%d, s%d, 7\ns_add_u32 s%d, s%d, s%d" % (T1, S_SL, T0, T0, T1))
        if nl < 64: A("s_mov_b64 exec, 0x%x" % ((1 << nl) - 1))
        A("buffer_load_dword v249, v13, %s, s%d offen" % (R(S_WO), T0))
        if nl < 64: A("s_mov_b64 exec, -1")
        return 1

    def seg(self): return self.o.get("seg", 0)
    def g2_setup(self, lo):
        Gen7.g2_setup(self, lo)
        if not self.seg(): return
        A = self.A; AD = self.G_AD; sg = self.seg()
        for nu in range(4): A("v_mov_b32 v%d, v%d" % (48 + nu, AD + nu) if False else "v_mov_b32 v%d, v%d" % (self.GB + nu, AD + nu))
        A("s_mul_i32 s%d, s%d, %d\ns_and_b32 s%d, s%d, 0x3fff\ns_lshl_b32 s%d, s%d, 2" % (T5, S_SL, sg * 1024, T5, T5, T7, T5))
    GB = 122 * 2 + 4
    def g2_rd(self, k):
        if not self.seg(): return Gen7.g2_rd(self, k)
        WF, AD, sg = self.G_WF, self.G_AD, self.seg()
        r = []
        if k % sg == 0:
            r = ["v_add_u32 v%d, s%d, v%d" % (AD + nu, T7, self.GB + nu) for nu in range(4)] + ["s_add_u32 s%d, s%d, %d\ns_and_b32 s%d, s%d, 0xffff" % (T7, T7, sg * 4096, T7, T7)]
        return r + ["ds_read_b64_tr_b16 %s, v%d offset:%d" % (v(WF + 16 * (k % 3) + 4 * nu + 2 * half, 2), AD + nu, (k % sg) * 4096 + half * 1024) for nu in range(4) for half in range(2)]
    def g2_ld(self, k):
        OF, AD, sg = self.G_OF, self.G_AD, self.seg()
        if not sg: return Gen7.g2_ld(self, k)
        r = [("vm", k, "buffer_load_dwordx4 %s, v%d, %s, s%d offen offset:%d sc1" % (v(OF + 8 * (k % 6) + 4 * rt, 4), AD + 4 + rt, R(S_WS), T5, (k % sg) * 1024)) for rt in range(2)]
        if k % sg == sg - 1: r.append("s_add_u32 s%d, s%d, %d\ns_and_b32 s%d, s%d, 0x3fff" % (T5, T5, sg * 1024, T5, T5))
        return r

    def halo_groups(self):
        g = []
        for part in range(2):
            for q in range(4):
                for i in range(2):
                    l = "buffer_load_dwordx4 v1, s[8:11], s%d offen offset:%d sc1 lds" % (T1, i * 1024)
                    if i == 0: l = "s_add_u32 m0, s%d, %d\ns_add_u32 s%d, s%d, %d\n" % (S_E1, (1 - part) * L_HK + (q & 1) * 2048 + (q >> 1) * 16384, T1, S_E0, part * 2048 + (q & 1) * 4096 + (q >> 1) * 32 * 8192) + l
                    g.append(l)
        return g
    def b1_with_halo(self):
        A = self.A; L = A.newlabel("Lhf")
        srd(A, 8, 24, WS_SIZE)
        A("s_cmp_lt_i32 s%d, 0\ns_cselect_b32 s10, 0, s10\ns_cbranch_scc1 %s" % (S_HB, L))
        self.poll(252, 2, 253, sleep=0)
        A.label(L)
        self.st("kvpoll")
        n0 = len(A.lines)
        self.b1()
        body = A.lines[n0:]; del A.lines[n0:]
        g = self.halo_groups(); first = self.o.get("hw0", 4)
        for l in g[:first]: A(l)
        g = g[first:]; step = max(1, len(body) // (len(g) + 1)); k = 0
        for i, l in enumerate(body):
            A.lines.append(l)
            if (i + 1) % step == 0 and k < len(g): A(g[k]); k += 1
        for l in g[k:]: A(l)

    def tail(self):
        A = self.A; o = self.o
        A("s_cmp_lt_u32 s3, 4\ns_cbranch_scc1 L_lo2")
        A("s_waitcnt lgkmcnt(0)")
        A("s_barrier")
        self.st("X")
        for gg in self.wo_groups(120, 2, T4):
            for l in gg: A(l)
        A("s_lshl_b32 s%d, s%d, 4\ns_add_u32 s%d, s%d, s%d\ns_lshl_b32 s%d, s%d, 7\ns_add_u32 s%d, s%d, 0x%x" % (T2, S_RB, T2, T2, S_G, T2, T2, T2, T2, WS_OF))
        A("s_waitcnt vmcnt(2)")
        A("s_barrier")
        self.st("C3")
        Ls = A.newlabel("Ls")
        A("s_cmp_eq_u32 s3, 4\ns_cbranch_scc0 %s" % Ls)
        self.flag(T2)
        A.label(Ls)
        self.RED = 0
        self.g2_setup(False)
        self.g2_end_setup()
        for l in self.g2_rd(0) + self.g2_rd(1): A(l)
        if o["rel"]:
            A("s_lshl_b32 s%d, s%d, 11\ns_add_u32 s%d, s%d, 0x%x\nv_lshl_add_u32 v22, v0, 7, s%d" % (T0, S_RB2, T0, T0, WS_OF, T0))
            self.poll(22, 16, 253, sleep=o.get("os", 2))
            self.st("opoll")
        else: self.g2_poll(False)
        self.g2_main(False)
        A("s_barrier")
        self.g2_end()
        A("s_branch L_fin")
        A.label("L_lo2")
        A("buffer_load_dword v253, v252, %s, 0 offen sc1" % R(S_WS))
        self.b2_prep()
        self.poll(252, 64, 253, issued=True, sleep=o.get("bfs", 8))
        self.st("bfok")
        VS = 120
        for r4 in range(4):
            A("s_add_u32 s%d, s%d, %d" % (T0, S_VB0, r4 * 4096))
            for ri in range(2):
                A("buffer_load_dwordx4 %s, v%d, %s, s%d offen offset:%d sc1" % (v(VS + 4 * (2 * r4 + ri), 4), 10 + r4, R(S_WS), T0, ri * 2048))
        A("v_add_u32 v248, s%d, v1" % (S_VB0 + 1))
        A("s_barrier")
        self.st("X")
        for r4 in range(4):
            for ri in range(2):
                A("s_waitcnt vmcnt(%d)" % (7 - 2 * r4 - ri))
                A("ds_write_b128 v248, %s offset:%d" % (v(VS + 4 * (2 * r4 + ri), 4), ri * 4096 + r4 * 1024))
        self.b2_prep2()
        A("s_waitcnt lgkmcnt(0)")
        A("s_barrier")
        self.st("C3")
        self.b2()
        self.st("b2end")
        self.g2_setup(True)
        A("s_waitcnt lgkmcnt(0)")
        if not self.seg():
            for l in self.g2_rd(0) + self.g2_rd(1): A(l)
        if o["rel"]:
            A("s_barrier")
            self.st("C5")
            o["c5l"] = -1
            if self.seg():
                for l in self.g2_rd(0) + self.g2_rd(1): A(l)
        else: self.g2_poll(True)
        self.g2_main(True)
        A("s_lshl_b32 s%d, s3, 13\nv_add_u32 v248, s%d, v1" % (T0, T0))
        for i in range(8): A("ds_write_b128 v248, %s offset:%d" % (v(self.G_ACC + 4 * i, 4), i * 1024))
        self.b2_stores(56, wait=False)
        self.epoch()
        A("s_waitcnt lgkmcnt(0)")
        A("s_barrier")

    def halo_phase(self, nh):
        A = self.A; o = self.o
        g = self.wo_groups(0, nh, 3)
        for l in g[0]: A(l)
        def hook():
            Ls = A.newlabel("Ls")
            A("s_cmp_lt_u32 s3, 4\ns_cbranch_scc1 %s" % Ls)
            A("s_waitcnt vmcnt(0)")
            self.b1_flag()
            A.label(Ls)
        self.mid_hook = hook
        dm = g[1:]
        if nh <= 8:
            dm = sum(([x, []] for x in dm), [])
        Lno = A.newlabel("Lno"); Lfin = A.newlabel("Lfin")
        A("s_cmp_eq_u32 s%d, 0\ns_cbranch_scc1 %s" % (S_RB, Lno))
        self.halo(dm)
        A("s_branch %s" % Lfin)
        A.label(Lno)
        hook()
        A("s_barrier")
        for gg in g[1:]:
            for l in gg: A(l)
        A.label(Lfin)

    def build(self):
        A = self.A; o = self.o
        nb = o["nb"]
        nh = (120 - 4 * nb) // 8
        assert 4 * nb + 8 * nh == 120 and nh >= 4
        self.entry()
        A("s_cmp_lt_u32 s3, 4\ns_cbranch_scc1 L_compute")
        def bs():
            self.b1_setup()
            A("v_add_u32 v%d, %d, v%d\nv_add_u32 v%d, %d, v%d" % (self.BA + 2, 65536, self.BA + 2, self.BA + 3, 65536, self.BA + 3))
        if o["wt"]:
            self.loader_setup_hook = lambda: (self.xb_addr(), A("v_lshlrev_b32 v13, 11, v0"))
            self.pair_tail = self.wo_touch
        self.loader()
        if o["bs"] == 1: bs()
        A("s_waitcnt vmcnt(0)")
        self.kv_publish()
        self.own_kv_reads(2)
        A("s_waitcnt lgkmcnt(0)")
        A("s_barrier")
        self.st("C1")
        A("s_setprio 1")
        def kflag():
            A("s_waitcnt vmcnt(0)")
            if o.get("kflag"): self.two_ways(lambda fl: self.flag(T2, fl=fl))
            else: self.flag(T2)
            self.st("C2")
        if o["b1first"]:
            self.b1()
            self.st("b1end")
            kflag()
            self.halo_fetch()
            self.q_read()
            self.chunk0(False)
            self.st("c0end")
            self.halo_prep()
        else:
            self.q_read()
            self.chunk0(False)
            self.st("c0end")
            kflag()
            self.halo_fetch()
            self.b1()
            self.halo_prep()
        A("s_waitcnt lgkmcnt(0)")
        A("s_barrier")
        self.b1_store()
        if nb: A("s_barrier")
        self.st("preHB")
        A("s_waitcnt vmcnt(4)")
        A("s_barrier")
        A("s_branch L_att")
        A.label("L_compute")
        self.setup()
        self.gemm1_compute()
        A("s_barrier")
        self.st("C1")
        self.nonce_load()
        self.q_read()
        self.nonce_fin()
        self.chunk0(True)
        self.st("c0end")
        self.halo_prep()
        if o["ls"] == 0: self.lo_setup()
        A("s_barrier")
        if nb: A("s_barrier")
        self.st("C2")
        if nb:
            for gg in self.wo_groups(8 * nh, nb, 3):
                for l in gg: A(l)
        if o["ls"] == 1: self.lo_setup()
        self.st("preHB")
        A("s_barrier")
        A("s_setprio 2")
        A.label("L_att")
        self.st("HB")
        self.halo_phase(nh)
        self.o_store()
        A("s_setprio 0")
        self.st("ost")
        self.tail()
        A.label("L_fin")
        if self.diag: A("s_waitcnt vmcnt(0)")
        self.st("end")
        self.stamp_store()
        A.label("L_end")
        A("s_endpgm")
        lines = hazard.fix(A.lines, verbose=o.get("verbose"))
        return module([dict(name=NAME + "_kernel", body="\n".join(lines) + "\n", grid=256, block=512, lds=LDS_BYTES, vgpr=256, accum=256)], single=True)

DEF9 = dict(DEF7, pair=1, xbi=9, sp0=3, nb=0, kflag=1, cti=11, bs=1, ls=0, b1first=1, rel=1, c5=0, nl=16, wt=0)
if __name__ == "__main__":
    import ast
    if len(sys.argv) > 1:
        for spec in sys.argv[1:]:
            name, kw = spec.split("=", 1)
            kw = dict(DEF9, **ast.literal_eval(kw))
            g = Gen9(diag=kw.pop("diag", True), cyc=kw.pop("cyc", False), opts=kw)
            open("work/%s.s" % name, "w").write(g.build())
    else:
        open("cdna_kernels/%s.s" % NAME, "w").write(Gen9(opts=dict(DEF9, verbose=True)).build())
```

```python
from k10 import *

def capture(g, fn):
    A = g.A; n0 = len(A.lines); fn(); r = A.lines[n0:]; del A.lines[n0:]
    return r

def split_chunks(lines, n):
    groups = [[]]
    for l in lines:
        if l.strip() == ";cut": groups.append([])
        else: groups[-1].append(l)
    cost = lambda g: sum(1 for l in g if l.strip().startswith("v_"))
    tot = sum(cost(g) for g in groups); out = [[] for _ in range(n)]; k = 0; acc = 0
    for g in groups:
        if acc >= tot * (k + 1) / n and k < n - 1: k += 1
        out[k] += g; acc += cost(g)
    return out

S_T2, S_OFL, S_OUT0, S_ROT, S_NEG = 19, 7, 16, 0, 1
class Gen11(Gen10):
    OUTS = S_OUT0
    OST = 235
    def cut(self): self.A.lines.append("    ;cut")

    def setup_scalar(self):
        A = self.A
        A("s_load_dwordx4 s[8:11], s[0:1], 16")
        A("s_load_dwordx4 s[12:15], s[0:1], 48")
        A("s_load_dwordx2 s[16:17], s[0:1], 64")
        A("s_load_dwordx2 s[24:25], s[0:1], 80")
        A("v_lshlrev_b32 v1, 4, v0")
        A("s_lshr_b32 s%d, s3, 1\ns_and_b32 s%d, s%d, 1" % (S_HD, S_HD, S_HD))
        A("s_and_b32 s%d, s3, 1\ns_sub_u32 s%d, 3, s%d\ns_cmp_lt_u32 s3, 4\ns_cselect_b32 s%d, s%d, s%d" % (T0, T1, T0, S_A, T1, T0))
        A("s_lshl_b32 s%d, s%d, 1\ns_add_u32 s%d, s%d, s%d" % (S_HEAD, S_G, S_HEAD, S_HEAD, S_HD))
        A("s_lshl_b32 s%d, s%d, 2" % (S_T0, S_RB))
        A("s_mov_b32 s%d, %s" % (S_C, f32(math.log2(math.e) / math.sqrt(32.0))))
        lr = self.o["g2map"]
        A("s_and_b32 s%d, s%d, %d\ns_lshl_b32 s%d, s%d, %d\ns_and_b32 s%d, s%d, %d\ns_add_u32 s%d, s%d, s%d" % (T0, S_XCD, (16 >> lr) - 1, T0, T0, lr, T1, S_IDX, (1 << lr) - 1, S_RB2, T0, T1))
        A("s_lshr_b32 s%d, s%d, %d\ns_lshl_b32 s%d, s%d, %d\ns_lshr_b32 s%d, s%d, %d\ns_add_u32 s%d, s%d, s%d" % (T0, S_XCD, 4 - lr, T0, T0, 5 - lr, T1, S_IDX, lr, S_SL, T0, T1))
        A("s_and_b32 s%d, s%d, 15\ns_xor_b32 s%d, s%d, %d\ns_lshl_b32 s%d, s%d, 1\ns_lshr_b32 s%d, s%d, 4\ns_add_u32 s%d, s%d, s%d" % (S_CB, S_IDX, S_CB, S_CB, self.o.get("cbx", 0), S_CB, S_CB, T0, S_IDX, S_CB, S_CB, T0))
        A("s_lshl_b32 s%d, s%d, 2\ns_and_b32 s%d, s3, 1\ns_add_u32 s%d, s%d, s%d\ns_lshr_b32 s%d, s3, 2\ns_lshl_b32 s%d, s%d, 1\ns_add_u32 s%d, s%d, s%d" % (S_T2, S_RB2, T0, S_T2, S_T2, T0, T0, T0, T0, S_T2, S_T2, T0))
        A("s_waitcnt lgkmcnt(0)")
        if self.diag:
            A("s_add_u32 s%d, s24, 0x8000000\ns_addc_u32 s%d, s25, 0\ns_and_b32 s%d, s%d, 0xffff\ns_mov_b32 s%d, 0x100000\ns_mov_b32 s%d, 0x20000" % (S_ST, S_ST + 1, S_ST + 1, S_ST + 1, S_ST + 2, S_ST + 3))
        srd(A, S_WO, 8, 1024 * 1024 * 2)
        srd(A, S_BX, 10, 2048 * 1024 * 2)
        srd(A, S_HRE, 12, 1024 * 1024 * 2)
        srd(A, S_HIM, 14, 1024 * 1024 * 2)
        srd(A, S_OUT, 16, 2048 * 2048 * 2)
        srd(A, S_WS, 24, WS_SIZE)
        A("s_add_u32 s%d, s24, 0x%x\ns_addc_u32 s%d, s25, 0" % (S_EP, WS_EP, S_EP + 1))
        self.o_flag_addr(S_OFL)
        A("s_and_b32 s%d, s%d, 3\ns_lshl_b32 s%d, s%d, 12\ns_mov_b32 s%d, 0xffff4000" % (S_ROT, S_SL, S_ROT, S_ROT, S_NEG))
        A("s_lshl_b32 s%d, s%d, 17\ns_lshl_b32 s%d, s%d, 16\ns_add_u32 s%d, s%d, s%d\ns_lshl_b32 s%d, s%d, 7\ns_add_u32 s%d, s%d, s%d\ns_add_u32 s%d, s%d, 32768" % (S_OUT0, S_T2, T1, S_HD, S_OUT0, S_OUT0, T1, T1, S_SL, S_OUT0, S_OUT0, T1, S_OUT0 + 1, S_OUT0))

    def setup_common(self, t):
        A = self.A
        A("v_mov_b32 v%d, 0xff800000" % t)
        for r in range(16):
            m = 0
            for lane in range(64):
                h, q = lane >> 5, lane & 31
                if 16 * ((r >> 2) & 1) + 8 * (r >> 3) + 4 * h + (r & 3) <= q: m |= 1 << lane
            A("s_mov_b32 s%d, 0x%x\ns_mov_b32 s%d, 0x%x" % (T0, m & 0xffffffff, T1, m >> 32))
            A("v_cndmask_b32 v%d, v%d, 0, s[%d:%d]" % (40 + r, t, T0, T1))
            self.cut()
        m = sum(1 << (16 * g + i) for g in range(4) for i in range(0, 16, 4) if ((i >> 2) & 1) == (g & 1))
        A("v_mov_b32 v%d, 0x3f803f80" % t)
        A("s_mov_b32 s%d, 0x%x\ns_mov_b32 s%d, 0x%x" % (T0, m & 0xffffffff, T1, m >> 32))
        for i in range(4): A("v_cndmask_b32 v%d, 0, v%d, s[%d:%d]" % (self.SEL + i, t, T0, T1))
        self.cut()
        A("v_lshrrev_b32 v14, 3, v0\nv_lshrrev_b32 v15, 4, v0\nv_lshlrev_b32 v15, 1, v15\nv_and_b32 v%d, 7, v0\nv_xor_b32 v15, v15, v%d" % (t, t))
        A("v_lshlrev_b32 v15, 4, v15\nv_lshl_add_u32 v14, v14, 11, v15")
        A("s_lshl_b32 s%d, s%d, 7\nv_add_u32 v14, s%d, v14" % (T0, S_SL, T0))
        A("v_add_u32 v15, %d, v14" % (16384 - 1024))
        self.cut()
        A("v_and_b32 v%d, 16, v0\nv_lshlrev_b32 v%d, 11, v%d" % (t, t, t))
        A("v_and_b32 v%d, 15, v0\nv_lshl_add_u32 v%d, v%d, 4, v%d\nv_and_b32 v%d, 32, v0\nv_lshl_add_u32 v%d, v%d, 3, v%d" % (t + 1, t, t + 1, t, t + 1, t, t + 1, t))
        A("s_add_u32 s%d, s%d, s%d\ns_lshl_b32 s%d, s%d, 16\ns_lshl_b32 s%d, s%d, 10\ns_add_u32 s%d, s%d, s%d\ns_add_u32 s%d, s%d, 0x%x" % (T0, S_T0, S_A, T1, T0, T2, S_HEAD, T1, T1, T2, T1, T1, WS_O))
        A("v_add_u32 v%d, s%d, v%d" % (self.OST, T1, t))
        self.cut()

    def g2_bases(self, d, t):
        A = self.A
        A("v_lshrrev_b32 v%d, 2, v0\nv_and_b32 v%d, 7, v%d" % (t, t, t))
        A("v_lshrrev_b32 v%d, 1, v%d\nv_lshlrev_b32 v%d, 5, v%d\nv_lshl_add_u32 v%d, v%d, 7, v%d" % (t + 1, t, t + 1, t + 1, d, t, t + 1))
        A("v_and_b32 v%d, 32, v0\nv_lshl_add_u32 v%d, v%d, 6, v%d\nv_and_b32 v%d, 3, v0\nv_lshl_add_u32 v%d, v%d, 3, v%d" % (t, d, t, d, t, d, t, d))
        A("s_lshl_b32 s%d, s%d, 16\ns_add_u32 s%d, s%d, %d" % (T0, S_HD, T0, T0, L_WO))
        if self.o["rot"]: A("s_lshl_b32 s%d, s%d, 2\ns_add_u32 s%d, s%d, s%d" % (T1, S_ROT, T0, T0, T1))
        A("v_add_u32 v%d, s%d, v%d" % (d, T0, d))
        self.cut()
        A("s_lshl_b32 s%d, s%d, 16\ns_lshl_b32 s%d, s%d, 14\ns_add_u32 s%d, s%d, s%d\ns_add_u32 s%d, s%d, 0x%x" % (T0, S_T2, T1, S_HD, T0, T0, T1, T0, T0, WS_O))
        A("v_add_u32 v%d, s%d, v1" % (d + 1, T0))
        A("s_lshl_b32 s%d, s%d, 1\ns_add_u32 s%d, s%d, s%d\ns_lshl_b32 s%d, s%d, 11\ns_add_u32 s%d, s%d, 0x%x\nv_lshl_add_u32 v%d, v0, 7, s%d" % (T0, S_T2, T0, T0, S_HD, T0, T0, T0, T0, WS_OF, d + 2, T0))
        self.cut()
    def g2_expand(self, AD, src):
        A = self.A
        for nu in range(4): A("v_xor_b32 v%d, %d, v%d" % (AD + nu, 32 * nu, src))
        A("v_mov_b32 v%d, v%d\nv_add_u32 v%d, 0x8000, v%d\nv_mov_b32 v%d, v%d" % (AD + 4, src + 1, AD + 5, src + 1, AD + 6, src + 2))
    def g2_end_setup(self):
        A = self.A; E = self.EA
        A("s_lshl_b32 s%d, s3, 12\nv_add_u32 v%d, s%d, v1\nv_xor_b32 v%d, 0x2000, v%d" % (T0, E, T0, E + 1, E))
        A("v_and_b32 v%d, 15, v0\nv_lshrrev_b32 v%d, 3, v0\nv_and_b32 v%d, 2, v%d\nv_lshrrev_b32 v%d, 5, v0\nv_or_b32 v%d, v%d, v%d" % (E + 2, E + 3, E + 3, E + 3, E + 4, E + 3, E + 3, E + 4))
        A("v_and_b32 v%d, 7, v0\nv_xor_b32 v%d, v%d, v%d\nv_lshlrev_b32 v%d, 4, v%d\nv_lshl_add_u32 v%d, v%d, 7, v%d" % (E + 4, E + 3, E + 3, E + 4, E + 3, E + 3, E + 2, E + 2, E + 3))
        A("s_xor_b32 s%d, s%d, 0x2000\nv_add_u32 v%d, s%d, v%d\nv_xor_b32 v%d, 64, v%d" % (T0, T0, E + 2, T0, E + 2, E + 3, E + 2))
        A("v_lshrrev_b32 v%d, 3, v0\nv_xor_b32 v%d, v%d, v%d\nv_lshlrev_b32 v%d, 4, v%d\nv_lshl_add_u32 v%d, v%d, 12, v%d" % (E + 5, E + 4, E + 4, E + 5, E + 4, E + 4, E + 4, E + 5, E + 4))

    def hi_setup_late(self):
        A = self.A
        self.setup_common(16)
        self.g2_bases(18, 16)
        self.g2_expand(226, 18)
        self.cut()
        n0 = len(A.lines)
        self.b1_setup()
        A("v_add_u32 v%d, %d, v%d\nv_add_u32 v%d, %d, v%d" % (self.BA + 2, 65536, self.BA + 2, self.BA + 3, 65536, self.BA + 3))

    def loader(self):
        A = self.A; L = T4; o = self.o
        A("s_sub_u32 s%d, s3, 4" % L)
        A("v_lshrrev_b32 v16, 3, v0\nv_lshrrev_b32 v17, 4, v0\nv_and_b32 v18, 7, v0")
        A("v_xor_b32 v19, v18, v17\nv_lshlrev_b32 v19, 4, v19\nv_lshl_add_u32 v2, v16, 11, v19")
        A("s_lshl_b32 s%d, s%d, 18\ns_lshl_b32 s%d, s%d, 16\ns_add_u32 s%d, s%d, s%d" % (T0, S_RB, T1, L, T0, T0, T1))
        A("v_add_u32 v2, s%d, v2" % T0)
        A("v_xor_b32 v3, 64, v2")
        A("v_add_u32 v3, %d, v3" % (16384 - 1024))
        A("v_add_u32 v4, %d, v2" % (2 * 16384 - 2048))
        A("v_add_u32 v5, %d, v3" % (2 * 16384 - 2048))
        A("v_and_b32 v19, 1, v17\nv_lshlrev_b32 v19, 1, v19\nv_xor_b32 v19, v19, v18\nv_lshlrev_b32 v19, 4, v19")
        A("v_mul_u32_u24 v6, 6144, v16\nv_add_u32 v6, v6, v19")
        A("s_mul_i32 s%d, s%d, %d\ns_lshl_b32 s%d, s%d, 7\ns_add_u32 s%d, s%d, s%d" % (T0, L, 16 * 6144, T1, S_G, T0, T0, T1))
        A("v_add_u32 v6, s%d, v6" % T0)
        A("v_xor_b32 v12, 64, v6")
        for t in range(1, 6):
            A("v_add_u32 v%d, %d, v%d" % (6 + t, (t & 1) * 8 * 6144 + (t >> 1) * 2048 - 1024 * (t % 3), 12 if t & 1 else 6))
        LX, LW, OX, OW = 98, 99, T6, T7
        A("s_lshl_b32 s%d, s%d, 12" % (LX, L))
        A("s_mul_i32 s%d, s%d, 6144\ns_add_u32 s%d, s%d, 16384" % (LW, L, LW, LW))
        cg, crb, cx = o["rotf"]
        A("s_mul_i32 s%d, s%d, %d" % (OX, S_XCD, 128 * cx))
        if cg: A("s_mul_i32 s%d, s%d, %d\ns_add_u32 s%d, s%d, s%d" % (T0, S_G, 128 * cg, OX, OX, T0))
        if crb: A("s_mul_i32 s%d, s%d, %d\ns_add_u32 s%d, s%d, s%d" % (T0, S_RB, 128 * crb, OX, OX, T0))
        A("s_and_b32 s%d, s%d, 2047\ns_mul_i32 s%d, s%d, 3072" % (OX, OX, OW, OX))
        def issue(s_):
            sl = ((s_ + 2) % 3) * STAGE
            A("s_add_u32 m0, s%d, %d" % (LX, sl))
            for i in range(4): A("buffer_load_dwordx4 v%d, %s, s%d offen offset:%d lds" % (2 + i, R(S_X), OX, 1024 * i))
            A("s_add_u32 m0, s%d, %d" % (LW, sl))
            A("s_add_u32 s%d, s%d, 128\ns_and_b32 s%d, s%d, 2047" % (OX, OX, OX, OX))
            for t in range(3): A("buffer_load_dwordx4 v%d, %s, s%d offen offset:%d lds" % (6 + t, R(S_W), OW, 1024 * t))
            A("s_add_u32 m0, m0, 3072")
            for t in range(3, 6): A("buffer_load_dwordx4 v%d, %s, s%d offen offset:%d lds" % (6 + t, R(S_W), OW, 1024 * (t - 3)))
            A("s_mul_i32 s%d, s%d, 3072" % (OW, OX))
        A("s_waitcnt lgkmcnt(0)")
        srd(A, S_X, 4, 2048 * 1024 * 2)
        srd(A, S_W, 6, 1024 * 3072 * 2)
        issue(0); issue(1)
        self.setup_scalar()
        self.nonce_load()
        self.code_touch()
        A("s_lshl_b32 s%d, s2, 2\ns_add_u32 s%d, s%d, s%d\ns_lshl_b32 s%d, s%d, 11\ns_add_u32 s4, s8, s%d\ns_addc_u32 s5, s9, 0" % (T0, T0, T0, T4, T0, T0, T0))
        A("s_cmp_lt_u32 s%d, 2\ns_cselect_b32 s%d, 16, 11\ns_lshl_b32 s%d, s%d, s%d" % (T4, T0, T0, S_IDX, T0))
        A("s_bitcmp1_b32 s%d, 0\ns_cselect_b32 s8, s14, s12\ns_cselect_b32 s9, s15, s13\ns_add_u32 s8, s8, s%d\ns_addc_u32 s9, s9, 0" % (T4, T0))
        A("s_and_b32 s%d, s3, 1\ns_lshl_b32 s%d, s%d, 5\ns_add_u32 s%d, s%d, s%d\ns_lshl_b32 s%d, s%d, 1\ns_add_u32 s%d, s%d, s%d" % (T1, S_KVB, S_HEAD, S_KVB, S_KVB, T1, T1, S_RB, S_KVB, S_KVB, T1))
        A("s_add_u32 s%d, s%d, s3\ns_sub_i32 s%d, s%d, 8" % (T0, T1, S_HB, T0))
        A("s_max_i32 s%d, s%d, 0" % (T0, S_HB))
        A("s_lshl_b32 s%d, s%d, 6\ns_add_u32 s%d, s%d, s%d" % (T1, S_G, T0, T0, T1))
        A("s_lshl_b32 s%d, s%d, 7\ns_add_u32 s%d, s%d, 0x%x\nv_lshl_add_u32 v252, v0, 12, s%d" % (T1, T0, T1, T1, WS_KVF, T1))
        A("s_lshl_b32 s%d, s%d, 13\ns_lshl_b32 s%d, s%d, 12" % (S_E0, T0, S_E1, L))
        self.xb_addr()
        A("v_lshlrev_b32 v13, 11, v0")
        self.st("entry"); self.st("preB0")
        w0, w1 = o["su0"], o["su1"]
        pieces = split_chunks(capture(self, self.hi_setup_late), w1 - w0)
        xbi, sp0, cti = o["xbi"], o["sp0"], o["cti"]
        def wait_even(n_even, n_odd):
            La = A.newlabel("Lw"); Lb = A.newlabel("Lw")
            A("s_bitcmp1_b32 s%d, 0\ns_cbranch_scc1 %s" % (S_G, La))
            A("s_waitcnt vmcnt(%d)\ns_branch %s" % (n_even, Lb))
            A.label(La)
            A("s_waitcnt vmcnt(%d)" % n_odd)
            A.label(Lb)
        for it in range(14):
            if it in (xbi + 1, xbi + 2): wait_even(16, 10)
            else: A("s_waitcnt vmcnt(10)")
            A("s_barrier")
            issue(it + 2)
            if it == xbi:
                La = A.newlabel("Lx")
                A("s_bitcmp1_b32 s%d, 0\ns_cbranch_scc1 %s" % (S_G, La))
                self.xb_fetch()
                A.label(La)
            if it == 2:
                A("s_waitcnt lgkmcnt(0)")
                self.nonce_fin()
                Lh = A.newlabel("Lid")
                A("s_cmp_eq_u32 s3, 4\ns_cbranch_scc0 %s" % Lh)
                A("s_lshl_b32 s%d, s%d, 4\ns_add_u32 s%d, s%d, s%d\ns_lshl_b32 s%d, s%d, 7\ns_add_u32 s%d, s%d, 0x%x" % (T0, S_G, T0, T0, S_RB, T0, T0, T0, T0, WS_ID))
                self.flag(T0, S_XID)
                A.label(Lh)
            if sp0 <= it < sp0 + 8:
                for i in range(2): A("s_load_dwordx2 s[%d:%d], s[4:5], %d" % (10 + 2 * i, 11 + 2 * i, 60 + 128 * (2 * (it - sp0) + i)))
                if it == sp0: A("s_load_dword s6, s[8:9], 0")
            if it == cti:
                self.code_touch()
                for i in range(2):
                    A("s_add_u32 s%d, s%d, %d\ns_min_u32 s%d, s%d, 15\ns_lshl_b32 s%d, s%d, 4\ns_add_u32 s%d, s%d, s%d\ns_lshl_b32 s%d, s%d, 7\ns_add_u32 s%d, s%d, 0x%x" % (T0, S_RB, i + 1, T0, T0, T1, S_G, T0, T0, T1, T0, T0, T0, T0, WS_ID))
                    A("s_load_dword s%d, s[24:25], s%d" % (20 + i, T0))
                A("s_lshl_b32 s%d, s%d, 7\ns_add_u32 s%d, s%d, 0x%x" % (T0, S_KVB, T0, T0, WS_KVF + 60))
                A("s_load_dwordx2 s[14:15], s[24:25], s%d" % T0)
            if w0 <= it < w1: A.lines += pieces[it - w0]
        assert xbi + 2 <= 13
        n = self.wo_touch() if o["wt"] else 0
        La = A.newlabel("Lt"); Lb = A.newlabel("Lt")
        A("s_bitcmp1_b32 s%d, 0\ns_cbranch_scc1 %s" % (S_G, La))
        A("s_waitcnt vmcnt(%d)\ns_barrier\ns_waitcnt vmcnt(%d)\ns_barrier\ns_branch %s" % (10 + n, n, Lb))
        A.label(La)
        n += self.xb_fetch()
        A("s_waitcnt vmcnt(%d)\ns_barrier\ns_waitcnt vmcnt(%d)\ns_barrier" % (10 + n, n))
        A.label(Lb)
        self.st("B0")

    def lo_setup(self, P=32):
        A = self.A
        self.b2_row()
        if not self.o["amlate"]: self.b2_am(240, 56)
        A("v_and_b32 v56, 48, v0\nv_add_u32 v56, %d, v56" % L_CT)
        A("v_and_b32 v57, 12, v0\nv_and_b32 v58, 3, v0\nv_lshl_add_u32 v57, v57, 1, v58\nv_lshl_add_u32 v%d, v57, 6, v56" % P)
        A("v_and_b32 v57, 15, v0\nv_lshl_add_u32 v%d, v57, 6, v56" % (P + 1))
        A("v_and_b32 v56, 32, v0\nv_lshlrev_b32 v56, 2, v56\nv_xor_b32 v%d, v56, v1" % (P + 2))
        A("v_lshrrev_b32 v56, 2, v0\nv_and_b32 v56, 7, v56")
        A("v_lshlrev_b32 v58, 3, v58\nv_lshl_add_u32 v58, v56, 5, v58")
        A("v_and_b32 v56, 12, v0\nv_lshl_add_u32 v58, v56, 8, v58\nv_and_b32 v56, 16, v0\nv_lshl_add_u32 v58, v56, 5, v58\nv_and_b32 v56, 32, v0\nv_lshl_add_u32 v%d, v56, 8, v58" % (P + 3))
        A("s_lshl_b32 s%d, s3, 13\nv_add_u32 v%d, s%d, v1" % (T0, P + 4, T0))
        A("v_and_b32 v252, 48, v0\nv_lshl_add_u32 v252, v252, 1, v57")
        A("s_lshr_b32 s%d, s%d, 1\ns_lshl_b32 s%d, s%d, 8\ns_and_b32 s%d, s3, 2\ns_lshl_b32 s%d, s%d, 6\ns_add_u32 s%d, s%d, s%d" % (T0, S_XCD, T0, T0, T1, T1, T1, T0, T0, T1))
        A("s_and_b32 s%d, s3, 1\ns_lshl_b32 s%d, s%d, 4\ns_add_u32 s%d, s%d, s%d" % (T1, T1, T1, T0, T0, T1))
        A("v_add_u32 v252, s%d, v252\nv_lshlrev_b32 v252, 7, v252\nv_add_u32 v252, 0x%x, v252" % (T0, WS_BF))
        A("s_lshl_b32 s%d, s%d, 15" % (T0, S_GAM))
        A("s_and_b32 s%d, s3, 2\ns_lshl_b32 s%d, s%d, 13\ns_add_u32 s%d, s%d, s%d" % (T1, T1, T1, T0, T0, T1))
        A("s_and_b32 s%d, s3, 1\ns_lshl_b32 s%d, s%d, 10\ns_add_u32 s%d, s%d, s%d\ns_add_u32 s%d, s%d, 0x%x" % (T1, T1, T1, T0, T0, T1, S_VB0, T0, WS_VB))
        self.g2_bases(P + 5, 56)
    def lo_unpark(self):
        A = self.A
        for i in range(8): A("v_mov_b32 v%d, v%d" % (208 + i, 32 + i))
    def halo_prep(self):
        A = self.A
        A("s_cmp_eq_u32 s%d, 1\ns_cselect_b32 s%d, 4, s%d\ns_cselect_b32 s%d, 0, -1" % (S_RB, T0, S_A, T2))
        A("s_sub_u32 s%d, 8, s%d" % (T5, T0))
        A("s_lshl_b32 s%d, s%d, 14\nv_add_u32 v3, s%d, v1\ns_lshl_b32 s%d, s%d, 11\nv_add_u32 v2, s%d, v3" % (T1, S_HD, T1, T0, T0, T0))
        A("s_and_b32 s%d, s%d, 0xff800000" % (T2, T2))
        for r in range(16): A("v_bfi_b32 v%d, v%d, 0, s%d" % (self.MK + r, self.MK + r, T2))
    def o_store(self):
        A = self.A
        O, LS, PKR = self.O, self.LS, self.CI
        A("v_rcp_f32 v%d, v%d" % (LS, LS))
        for h in range(2):
            for r in range(8 * h, 8 * h + 8): A("v_mul_f32 v%d, v%d, v%d" % (O + r, O + r, LS))
            for r in range(4): A(cvt(PKR + 4 * h + r, O + 8 * h + 2 * r, O + 8 * h + 2 * r + 1))
            A("buffer_store_dwordx4 %s, v%d, %s, 0 offen offset:%d sc1" % (v(PKR + 4 * h, 4), self.OST, R(S_WS), 512 * h))

    def g2_ld(self, k):
        AD = self.G_AD
        r = []
        if k % 4 == 0:
            if self.o["rot"]: r.append("s_add_u32 s%d, s%d, %d\ns_and_b32 s%d, s%d, 0x3fff" % (T3, S_ROT, k * 1024, T3, T3))
            else: r.append("s_mov_b32 s%d, %d" % (T3, k * 1024))
        for rt in range(2):
            r.append(("vm", k, "buffer_load_dwordx4 %s, v%d, %s, s%d offen offset:%d sc1" % (v(self.ring[k % 6] + 4 * rt, 4), AD + 4 + rt, R(S_WS), T3, (k & 3) * 1024)))
        return r
    def g2_rd(self, k):
        if not self.o["rot"]: return Gen.g2_rd(self, k)
        WF, AD = self.G_WF, self.G_AD
        r = []
        if k % 4 == 0 and k:
            r = ["s_add_u32 s%d, s%d, %d\ns_and_b32 s%d, s%d, 0x3fff\ns_cselect_b32 s%d, 0x4000, s%d" % (T7, S_ROT, k * 1024, T7, T7, T7, S_NEG)] + ["v_add_u32 v%d, s%d, v%d" % (AD + nu, T7, AD + nu) for nu in range(4)]
        return r + ["ds_read_b64_tr_b16 %s, v%d offset:%d" % (v(WF + 16 * (k % 3) + 4 * nu + 2 * half, 2), AD + nu, (k % 4) * 4096 + half * 1024) for nu in range(4) for half in range(2)]
    def g2_main(self, vm, issued, bars, late={}):
        A = self.A
        ACC, WF = self.G_ACC, self.G_WF
        NK = 16; D = 5
        def emit(l):
            if isinstance(l, tuple): vm.add(l[1]); A(l[2])
            else: A(l)
        for k in range(issued, D):
            for l in self.g2_ld(k): emit(l)
        for k in range(NK):
            for kk, name in bars:
                if kk == k:
                    A("s_barrier"); self.st(name)
            A("s_waitcnt vmcnt(%d) lgkmcnt(%d)" % (vm.cnt(k), 8 if k + 1 < NK else 0))
            ms = [mf16(ACC + 16 * rt + 4 * nu, WF + 16 * (k % 3) + 4 * nu, self.ring[k % 6] + 4 * rt, (ACC + 16 * rt + 4 * nu) if k else None) for rt in range(2) for nu in range(4)]
            fill = (self.g2_rd(k + 2) if k + 2 < NK else []) + (self.g2_ld(k + D) if k + D < NK else []) + late.get(k, [])
            for l in weave(ms, fill, per=2): emit(l)
        self.st("g2end")
    def o_ready(self, vm, n, cnt):
        A = self.A; Lok = A.newlabel("Lo")
        A("s_waitcnt vmcnt(%d)" % cnt)
        A("s_mov_b64 exec, 0xffff")
        A("v_cmp_ne_u32 vcc, s%d, v253" % S_N)
        A("s_mov_b64 exec, -1")
        return Lok
    def o_read(self):
        A = self.A
        A("s_mov_b64 exec, 0xffff")
        A("buffer_load_dword v253, v%d, %s, 0 offen sc1" % (self.G_AD + 6, R(S_WS)))
        A("s_mov_b64 exec, -1")

    def halo_phase(self):
        A = self.A; o = self.o; KB = 56
        ne = o["ne"]
        def rd(i, part):
            base = KB + 8 * i if part == 0 else self.VB + 8 * (i & 1)
            return ["ds_read_b128 %s, %s offset:%d" % (v(base + 4 * f, 4), "v3" if i else "v2", (1 - part) * L_HK + ((8 - i) * 2048 if i else 0) + f * 1024) for f in range(2)]
        def bulk(pre):
            n1 = o["n1"]
            g = self.wo_groups(48 + 4 * ne, 18 - ne, T4)
            for gg in g[:n1 + 1]:
                for l in gg: A(l)
            A("s_waitcnt vmcnt(%d) lgkmcnt(0)" % n1)
            A("s_barrier")
            self.b1_flag()
            for gg in g[n1 + 1:] + self.wo_groups(0, 12, T4):
                for l in gg: A(l)
            self.st("mid")
        for i in range(8):
            for l in rd(i, 0): A(l)
        Lfin = A.newlabel("Lfin"); Lno = A.newlabel("Lno")
        if not o["p1first"]:
            Ls = A.newlabel("Ls")
            A("s_cmp_lt_u32 s3, 4\ns_cbranch_scc1 %s" % Ls)
            bulk(0)
            A.label(Ls)
        A("s_cmp_eq_u32 s%d, 0\ns_cbranch_scc1 %s" % (S_RB, Lno))
        def sync():
            L2 = A.newlabel("Ls"); L3 = A.newlabel("Ls")
            A("s_cmp_lt_u32 s3, 4\ns_cbranch_scc0 %s" % L2)
            A("s_barrier")
            self.st("mid")
            if o["p1first"]:
                A("s_branch %s" % L3)
                A.label(L2)
                bulk(1)
                A.label(L3)
            else: A.label(L2)
        def mid():
            A("s_waitcnt lgkmcnt(0)")
            for l in rd(0, 1) + rd(1, 1): A(l)
            sync()
        self.chunk(False, 4, 8, lambda i: KB + 8 * i, lambda i: self.VB + 8 * (i & 1),
                   kwait=lambda i: "s_waitcnt lgkmcnt(%d)" % (14 - 2 * i), mid=mid, vread=lambda i: rd(i, 1))
        A("s_branch %s" % Lfin)
        A.label(Lno)
        A("s_waitcnt lgkmcnt(0)")
        sync()
        A.label(Lfin)

    def build(self):
        A = self.A; o = self.o
        self.entry()
        A("s_cmp_lt_u32 s3, 4\ns_cbranch_scc1 L_compute")
        self.loader()
        A("s_waitcnt vmcnt(0)")
        self.kv_publish()
        self.own_kv_reads(2)
        A("s_waitcnt lgkmcnt(0)")
        A("s_barrier")
        self.st("C1")
        A("s_setprio 1")
        self.b1()
        A("s_waitcnt vmcnt(0)")
        self.two_ways(lambda fl: self.flag(T2, fl=fl))
        self.st("C2")
        self.halo_fetch()
        self.q_read()
        self.chunk0(False)
        self.st("c0end")
        self.halo_prep()
        A("s_barrier")
        self.b1_store()
        A("s_waitcnt vmcnt(4)")
        A("s_barrier")
        A("s_branch L_att")
        A.label("L_compute")
        self.setup_scalar()
        A("v_mov_b32 v232, 0\nv_mov_b32 v244, 0\nv_mov_b32 v230, 0\nv_mov_b32 v231, 0")
        self.setup_common(16)
        if o["amlate"] < 2: self.lo_setup()
        self.gemm1_compute()
        A("s_barrier")
        self.st("C1")
        self.nonce_load()
        A("ds_read_b128 %s, v2\nds_read_b128 %s, v2 offset:1024" % (v(self.Q, 4), v(self.Q + 4, 4)))
        if o["amlate"] < 2: self.lo_unpark()
        ne = o["ne"]
        g = self.wo_groups(48, ne, 3) if ne else [[]]
        for l in g[0]: A(l)
        A("s_waitcnt lgkmcnt(0)")
        self.nonce_fin()
        A("s_add_u32 s%d, s%d, 1" % (T5, S_A))
        p1 = [sum(g[1 + 2 * i:3 + 2 * i], []) for i in range(3)]
        self.chunk(True, 3, 4, lambda i: 56 + 16 * i, lambda i: 64 + 16 * i, kextra=lambda i: p1[i] if i < 3 else [], extra=lambda i: g[7 + 4 * i:11 + 4 * i])
        self.st("c0end")
        self.halo_prep()
        if o["amlate"] == 2: self.lo_setup(208)
        for r4 in range(4): A("v_xor_b32 v%d, %d, v210" % (216 + r4, 32 * r4))
        if o["amlate"]: self.b2_am(240, 120)
        A("s_barrier")
        self.st("C2")
        A("s_barrier")
        A("s_setprio 2")
        A.label("L_att")
        self.st("HB")
        self.halo_phase()
        A("s_cmp_lt_u32 s3, 4\ns_cbranch_scc1 L_lo2")
        self.G_AD = 226; self.ring = [56 + 8 * i for i in range(6)]; self.EA = 24
        vm = VM()
        if o["early"]: self.o_read(); vm.add("f")
        self.o_store(); vm.add("o", 2)
        A("s_setprio %d" % o["hp"])
        self.st("ost")
        A("s_waitcnt vmcnt(%d) lgkmcnt(0)" % (3 if o["early"] else 2))
        A("s_barrier")
        self.st("X")
        if not o["early"]:
            self.o_read()
            for l in self.g2_rd(0) + self.g2_rd(1): A(l)
            A("s_waitcnt vmcnt(1)")
            self.flag(S_OFL)
            A("s_barrier")
            Lok = self.o_ready(vm, 5, 1)
            A("s_cbranch_vccz %s" % Lok)
            self.poll(self.G_AD + 6, 16, 253, sleep=o.get("os", 2))
            A.label(Lok)
        else:
            Lok = self.o_ready(vm, 5, 2)
            Lj = A.newlabel("Lo")
            A("s_cbranch_vccz %s" % Lok)
            A("s_waitcnt vmcnt(0)")
            self.flag(S_OFL)
            A("s_barrier")
            self.poll(self.G_AD + 6, 16, 253, sleep=o.get("os", 2))
            for k in range(5):
                for l in self.g2_ld(k): A(l[2] if isinstance(l, tuple) else l)
            A("s_branch %s" % Lj)
            A.label(Lok)
            nq = o["nq"]
            for k in range(5):
                if k == nq:
                    A("s_waitcnt vmcnt(%d)" % vm.cnt("o"))
                    self.flag(S_OFL)
                    A("s_barrier")
                for l in self.g2_ld(k):
                    if isinstance(l, tuple): vm.add(l[1]); A(l[2])
                    else: A(l)
            A.label(Lj)
            self.st("opoll")
            for l in self.g2_rd(0) + self.g2_rd(1): A(l)
        late = {}
        if not o["rot"]:
            lw = self.wo_groups(120, 2, T4)
            late = {0: lw[0] + [("vm", "w", lw[1][0])], 1: [("vm", "w", lw[2][0])]}
            assert 8 <= o["c5"] <= 12
        es = [l.strip() for l in capture(self, self.g2_end_setup)]
        for i in range(5): late[11 + i] = es[5 * i:5 * i + 5]
        self.g2_main(vm, 5 if o["early"] else 0, [(o["c5"], "C5")], late)
        self.g2_send()
        A("s_setprio 0")
        A("s_barrier")
        self.g2_fin(lambda: A("s_barrier"))
        A("s_barrier")
        A("s_branch L_fin")
        A.label("L_lo2")
        self.o_store()
        self.st("ost")
        self.G_AD = 16; self.ring = [72, 80, 24, 32, 88, 96]; self.EA = 2
        VS, P = 120, 208
        Lj = A.newlabel("Lv")
        A("s_waitcnt vmcnt(0)")
        A("buffer_load_dword v253, v252, %s, 0 offen sc1" % R(S_WS))
        self.flag(S_OFL)
        A("s_waitcnt vmcnt(1)")
        A("v_cmp_ne_u32 vcc, s%d, v253" % S_N)
        A("s_nop 1")
        A("s_cbranch_vccz %s" % Lj)
        self.poll(252, 64, 253, sleep=o.get("bfs", 8))
        A.label(Lj)
        for r4 in range(4):
            A("s_add_u32 s%d, s%d, %d" % (T0, S_VB0, r4 * 4096))
            for ri in range(2):
                A("buffer_load_dwordx4 %s, v%d, %s, s%d offen offset:%d sc1" % (v(VS + 4 * (2 * r4 + ri), 4), 216 + r4, R(S_WS), T0, ri * 2048))
        HB, HC, TW = self.HB, self.HC, self.TW
        for e in range(2):
            for ri in range(2):
                A("ds_read_b128 %s, v%d offset:%d" % (v(TW + 8 * e + 4 * ri, 4), P, 4096 + ri * 2048 + e * 256))
                A("ds_read_b128 %s, v%d offset:%d" % (v(HB + 8 * e + 4 * ri, 4), P, ri * 2048 + e * 256))
                A("ds_read_b128 %s, v%d offset:%d" % (v(HC + 8 * e + 4 * ri, 4), P + 1, ri * 2048 + e * 1024))
        A("s_setprio 0")
        self.st("bfok")
        prep = capture(self, lambda: ([A("v_mov_b32 v%d, v%d" % (72 + i, 240 + i)) for i in range(8)], [A("v_xor_b32 v%d, %d, v%d" % (2 + q, 32 * q, P + 3)) for q in range(8)], self.g2_expand(16, P + 5)))
        if o["prepx"] == 0: A.lines += prep
        A("s_waitcnt lgkmcnt(0)")
        if o["prepx"] == 0: self.b2_prep2()
        A("s_barrier")
        self.st("X")
        if o["rot"]:
            for gg in self.wo_groups(120, 2, 3):
                for l in gg: A(l)
        for r4 in range(4):
            for ri in range(2):
                A("s_waitcnt vmcnt(%d)" % ((9 if o["rot"] else 7) - 2 * r4 - ri))
                A("ds_write_b128 v%d, %s offset:%d" % (P + 4, v(VS + 4 * (2 * r4 + ri), 4), ri * 4096 + r4 * 1024))
        if o["prepx"] == 1:
            A.lines += prep
            self.b2_prep2()
        A("s_waitcnt vmcnt(0) lgkmcnt(0)")
        A("s_barrier")
        self.st("C3")
        vm = VM()
        npre = o["npre"]
        if o.get("lp"): A("s_setprio 2")
        def hook(e):
            self.st("h%d" % e)
            if o.get("lp") and e == 0: A("s_setprio 0")
            if not npre: return
            Ls = A.newlabel("Lk")
            A("s_cmp_eq_u32 s%d, 0\ns_cbranch_scc1 %s" % (S_TT, Ls))
            if o["c5l"] == -2 + e:
                A("s_barrier"); self.st("C5")
            if e == 0: self.o_read()
            else:
                Lok = self.o_ready(vm, npre, 0)
                A("s_cbranch_vccz %s" % Lok)
                self.poll(self.G_AD + 6, 16, 253, sleep=o.get("os", 2))
                A.label(Lok)
                self.st("opoll")
                for k in range(npre):
                    for l in self.g2_ld(k):
                        if isinstance(l, tuple): vm.add(l[1]); A(l[2])
                        else: A(l)
            A.label(Ls)
        self.b2_hook = hook
        self.b2()
        self.st("b2end")
        if o.get("lp2") is not None: A("s_setprio %d" % o["lp2"])
        if not npre:
            self.poll(self.G_AD + 6, 16, 253, sleep=o.get("os", 2))
            self.st("opoll")
        A("s_waitcnt lgkmcnt(0)")
        for l in self.g2_rd(0) + self.g2_rd(1): A(l)
        sts = [l.strip() for l in capture(self, lambda: self.b2_stores(56, wait=False))]
        es = [l.strip() for l in capture(self, self.g2_end_setup)]
        late = {11 + i: [("vm", "s", l)] for i, l in enumerate(sts)}
        for i in range(5): late[11 + i] = late.get(11 + i, []) + es[5 * i:5 * i + 5]
        self.g2_main(vm, npre, [(o["c5l"], "C5"), (o["y1"], "Y1"), (o["z"], "Z")], late)
        self.g2_send()
        A("s_barrier")
        self.g2_fin()
        self.epoch()
        A.label("L_fin")
        if self.diag: A("s_waitcnt vmcnt(0)")
        self.st("end")
        self.stamp_store()
        A.label("L_end")
        A("s_endpgm")
        lines = hazard.fix([l for l in A.lines if l.strip() != ";cut"], verbose=o.get("verbose"))
        return module([dict(name=NAME + "_kernel", body="\n".join(lines) + "\n", grid=256, block=512, lds=LDS_BYTES, vgpr=256, accum=256)], single=True)

DEF11 = dict(DEF10, su0=0, su1=12, ne=0, p1first=0, prepx=1, npre=4, c5=10, c5l=0, y1=5, rot=0, nq=2, amlate=2, hp=0, early=0)
if __name__ == "__main__":
    import ast
    if len(sys.argv) > 1:
        for spec in sys.argv[1:]:
            name, kw = spec.split("=", 1)
            kw = dict(DEF11, **ast.literal_eval(kw))
            g = Gen11(diag=kw.pop("diag", True), cyc=kw.pop("cyc", False), opts=kw)
            open("work/%s.s" % name, "w").write(g.build())
    else:
        open("cdna_kernels/%s.s" % NAME, "w").write(Gen11(opts=dict(DEF11, verbose=True)).build())
```
